```python
import torch

def _softmax(x, axis=-1):
    return torch.softmax(x, dim=axis)
def _gelu(x):
    return torch.nn.functional.gelu(x, approximate="tanh")
def _silu(x):
    return torch.nn.functional.silu(x)
def _sigmoid(x):
    return torch.sigmoid(x)
def _layernorm(x, axis=-1, eps=1e-5):
    m = x.mean(dim=axis, keepdim=True)
    v = x.var(dim=axis, keepdim=True, unbiased=False)
    return (x - m) / torch.sqrt(v + eps)
def _scatter_add(tgt, idx, src, axis=0):
    return tgt.clone().index_add_(axis, idx, src)
def _segment_sum(src, seg, n):
    out = torch.zeros((n,) + src.shape[1:], dtype=src.dtype)
    return out.index_add_(0, seg, src)
def _pad(x, pw):
    flat = tuple(v for pair in reversed(pw) for v in pair)
    return torch.nn.functional.pad(x, flat)

kernel_name = 'recurrent_scan__linear_attn_block__dense_activation_silu__prompt'

def setup_inputs():

    _w = (lambda a: (lambda t: t.to(torch.bfloat16) if t.is_floating_point() else t)(torch.as_tensor(a)))
    def _A_setup():
        B, S, D = 1, 2048, 448
        return {
            "x": _w((lambda *s: torch.randn(*s, dtype=torch.bfloat16) * 0.05)(B, S, D)),
            "wqkv": _w((lambda *s: torch.randn(*s, dtype=torch.bfloat16) * 0.2)(D, 3 * D)),
            "wo": _w((lambda *s: torch.randn(*s, dtype=torch.bfloat16) * 0.2)(D, D)),
        }
    _A_in = _A_setup()

    def _B_setup():
        B, S, D, F = 1, 2048, 448, 1792
        return {
            "x": _w((lambda *s: torch.randn(*s, dtype=torch.bfloat16) * 0.05)(B, S, D)),
            "w1": _w((lambda *s: torch.randn(*s, dtype=torch.bfloat16) * 0.8)(D, F) * (D ** -0.5)),
            "w2": _w((lambda *s: torch.randn(*s, dtype=torch.bfloat16) * 0.1)(F, D) * (F ** -0.5)),
        }
    _B_in = _B_setup()

    return {
        "A_x": _A_in["x"],
        "A_wqkv": _A_in["wqkv"],
        "A_wo": _A_in["wo"],
        "B_x": _B_in["x"],
        "B_w1": _B_in["w1"],
        "B_w2": _B_in["w2"],
    }

def reference(A_x, A_wqkv, A_wo, B_x, B_w1, B_w2):
    def _A_ref(x, wqkv, wo):
        B, S, D = x.shape
        H = 16; Dh = D // H
        qkv = (lambda x, *d: x.permute(*d))((x @ wqkv).reshape(B, S, 3, H, Dh), 2, 0, 3, 1, 4)
        q, k, v = qkv[0], qkv[1], qkv[2]
        phi = lambda t: torch.where(t > 0, t + 1, torch.exp(t)) + 1e-6
        pq, pk = phi(q), phi(k)
        kv = torch.einsum("bhsd,bhse->bhde", pk, v)
        z = torch.einsum("bhsd->bhd", pk)
        num = torch.einsum("bhqd,bhde->bhqe", pq, kv)
        den = torch.einsum("bhqd,bhd->bhq", pq, z)[..., None] + 1e-6
        o = num / den
        return (lambda x, *d: x.permute(*d))(o, 0, 2, 1, 3).reshape(B, S, D) @ wo

    def _B_ref(x, w1, w2):
        h = torch.einsum("bsd,df->bsf", x, w1)
        h = _silu(h)
        out = torch.einsum("bsf,fd->bsd", h, w2)
        return out

    x = A_x
    xn = _layernorm(x, axis=-1)
    s = _A_ref(xn, A_wqkv, A_wo)
    g = _silu(_B_ref(xn, B_w1, B_w2))
    return x + s * g
```

```python
class Asm:
    def __init__(self):
        self.lines = []
    def __call__(self, s):
        for l in s.split('\n'):
            self.lines.append(l)
    def text(self):
        return '\n'.join(self.lines) + '\n'

def header(launch_lines):
    return '\n'.join(launch_lines) + '\n.amdgcn_target "amdgcn-amd-amdhsa--gfx950"\n.text\n'

def kernel_begin(name):
    return f'.globl {name}\n.p2align 8\n.type {name},@function\n{name}:\n'

def descriptor(name, vgpr, agpr=0, sgpr=102, kernarg=72, extra=''):
    acc = (vgpr + 3) // 4 * 4
    nfv = acc + agpr if agpr else vgpr
    return f'''.p2align 6
.amdhsa_kernel {name}
  .amdhsa_next_free_vgpr {nfv}
  .amdhsa_next_free_sgpr {sgpr}
  .amdhsa_accum_offset {acc}
  .amdhsa_group_segment_fixed_size 0
  .amdhsa_kernarg_size {kernarg}
  .amdhsa_user_sgpr_count 2
  .amdhsa_user_sgpr_kernarg_segment_ptr 1
  .amdhsa_system_sgpr_workgroup_id_x 1
  .amdhsa_float_denorm_mode_32 3
{extra}.end_amdhsa_kernel
'''
```

```python
import re

TRANS = ('v_exp_f32', 'v_log_f32', 'v_rcp_f32', 'v_rsq_f32', 'v_sqrt_f32', 'v_sin_f32', 'v_cos_f32', 'v_rcp_iflag_f32')
REG_RE = re.compile(r'^([vas])(\d+)$')
RNG_RE = re.compile(r'^([vas])\[(\d+):(\d+)\]$')

def regs_of(op):
    op = op.strip()
    m = re.match(r'^-?(?:abs\()?\|?([^|)]*)\|?\)?$', op)
    if m: op = m.group(1)
    m = REG_RE.match(op)
    if m: return [op]
    m = RNG_RE.match(op)
    if m: return [f'{m.group(1)}{i}' for i in range(int(m.group(2)), int(m.group(3)) + 1)]
    if op == 'vcc': return ['vcc']
    if op in ('vcc_lo', 'vcc_hi'): return ['vcc']
    if op == 'exec' or op in ('exec_lo', 'exec_hi'): return ['exec']
    if op == 'm0': return ['m0']
    return []

def split_ops(s):
    out, depth, cur = [], 0, ''
    for ch in s:
        if ch in '[(': depth += 1
        if ch in '])': depth -= 1
        if ch == ',' and depth == 0:
            out.append(cur.strip()); cur = ''
        else: cur += ch
    if cur.strip(): out.append(cur.strip())
    return out

class Ins:
    __slots__ = ('text', 'op', 'kind', 'rd', 'wr', 'srcc', 'srcab', 'tag', 'passes', 'wide', 'slots', 'need')
    def __init__(self, text, tag=None):
        self.text = text; self.tag = tag; self.need = None
        t = text.split(';')[0].strip()
        self.rd, self.wr, self.srcc, self.srcab = set(), set(), [], set()
        self.passes = 0; self.wide = False; self.slots = 1
        if not t or t.endswith(':') or t.startswith('.'):
            self.op = ''; self.kind = 'label' if t.endswith(':') else 'none'; self.slots = 0; return
        sp = t.split(None, 1)
        op = sp[0]; self.op = op
        rest = sp[1] if len(sp) > 1 else ''
        ops = split_ops(rest)
        mods = ''
        if ops:
            last = ops[-1].split(None, 1)
            if len(last) > 1 and not last[0].endswith(','):
                ops[-1] = last[0]; mods = last[1]
        R = [regs_of(o) for o in ops]
        flat = lambda l: set(x for y in l for x in y)
        base = re.sub(r'_(e32|e64|dpp|sdwa)$', '', op)
        if op.startswith('v_mfma'):
            self.kind = 'mfma'; self.wr = set(R[0]); self.srcab = flat(R[1:3]); self.srcc = R[3]; self.rd = self.srcab | set(R[3])
            self.passes = 8 if '32x32' in op else 4; self.slots = 2
        elif op.startswith('v_cmp'):
            self.kind = 'valu'; self.wr = set(R[0]); self.rd = flat(R[1:])
        elif op.startswith('v_permlane') and 'swap' in op:
            self.kind = 'perm'; self.wr = flat(R[:2]); self.rd = flat(R[:2]); self.slots = 2
        elif op.startswith('v_readlane') or op.startswith('v_readfirstlane'):
            self.kind = 'rdlane'; self.wr = set(R[0]); self.rd = flat(R[1:])
        elif op.startswith('v_'):
            self.kind = 'trans' if base in TRANS else 'valu'
            if self.kind == 'trans': self.slots = 2
            self.wr = set(R[0]); self.rd = flat(R[1:])
            if base in ('v_fmac_f32', 'v_dot2c_f32_bf16', 'v_writelane_b32') : self.rd |= self.wr
            if base.startswith('v_cndmask') and len(ops) == 3: self.rd.add('vcc')
            if op.endswith('_dpp') or 'quad_perm' in mods or 'row_' in mods: self.kind = 'dpp'; self.rd |= self.wr
            if base.startswith('v_pk_') or base.startswith('v_dot2'): self.kind = 'pk'
            if base in ('v_add_co_u32', 'v_sub_co_u32', 'v_addc_co_u32'):
                self.wr = flat(R[:2]); self.rd = flat(R[2:])
        elif op.startswith('ds_read') or op.startswith('ds_bpermute') or op.startswith('ds_swizzle'):
            self.kind = 'ds_r'; self.wr = set(R[0]); self.rd = flat(R[1:])
        elif op.startswith('ds_'):
            self.kind = 'ds_w'; self.rd = flat(R)
        elif op.startswith('buffer_load') or op.startswith('global_load'):
            if re.search(r'\blds\b', mods):
                self.kind = 'dma'; self.rd = flat(R) | {'m0'}
            else:
                self.kind = 'vm_ld'; self.wr = set(R[0]); self.rd = flat(R[1:])
        elif op.startswith('buffer_store') or op.startswith('global_store'):
            self.kind = 'vm_st'; self.rd = flat(R); self.wide = 'x4' in op or 'x3' in op
            self.srcc = R[0] if op.startswith('buffer') else R[1]
        elif op.startswith('buffer_atomic') or op.startswith('global_atomic'):
            self.kind = 'vm_st'; self.rd = flat(R)
            if 'sc0' in mods: self.kind = 'vm_ld'; self.wr = set(R[0])
        elif op.startswith('buffer_wbl2') or op.startswith('buffer_inv'):
            self.kind = 'vm_st'
        elif op.startswith('s_load') or op.startswith('s_memtime') or op.startswith('s_memrealtime'):
            self.kind = 'smem'; self.wr = set(R[0]); self.rd = flat(R[1:])
        elif op == 's_waitcnt': self.kind = 'wait'; self.slots = 0
        elif op == 's_nop': self.kind = 'nop'; self.slots = 0
        elif op == 's_barrier': self.kind = 'barrier'; self.slots = 0
        elif op.startswith('s_cbranch') or op == 's_branch' or op == 's_endpgm': self.kind = 'branch'; self.slots = 0
        elif op.startswith('s_cmp') or op.startswith('s_bitcmp'): self.kind = 'salu'; self.rd = flat(R); self.wr = {'scc'}; self.slots = 0
        elif op in ('s_setprio', 's_sleep'): self.kind = 'salu'; self.slots = 0
        elif op.startswith('s_'):
            self.kind = 'salu'; self.wr = set(R[0]); self.rd = flat(R[1:]); self.slots = 0
            if 'saveexec' in op: self.wr.add('exec'); self.rd.add('exec')
        else:
            raise ValueError('unknown op ' + text)
    def states(self):
        if self.kind in ('label', 'none'): return 0
        if self.kind == 'nop': return int(self.text.split()[1]) + 1
        return 1

VALU_K = ('valu', 'trans', 'perm', 'rdlane', 'dpp', 'pk')
VMEM_K = ('vm_ld', 'vm_st', 'dma')
DS_K = ('ds_r', 'ds_w')

def isv(r): return r[0] in 'va' and r != 'vcc'
def iss(r): return r[0] == 's' and r != 'scc' or r == 'vcc'

def hazard(p, c):
    n = 0
    if p.kind in VALU_K:
        vw = {r for r in p.wr if isv(r)}; sw = {r for r in p.wr if iss(r)}
        if c.kind == 'mfma' and vw & c.rd: n = max(n, 2)
        if p.kind == 'trans' and c.kind in VALU_K and c.kind != 'trans' and vw & c.rd: n = max(n, 1)
        if c.kind in ('perm', 'dpp') and vw & c.rd: n = max(n, 2)
        if c.kind == 'rdlane' and vw & c.rd: n = max(n, 1)
        if c.kind in VMEM_K and sw & c.rd: n = max(n, 5)
        if c.kind in VALU_K and sw & c.rd: n = max(n, 4 if c.kind == 'rdlane' else 2)
        if c.kind == 'salu' and sw & c.rd: n = max(n, 1)
        if p.op.startswith('v_dot') and vw & (c.rd | c.wr) and c.op != p.op: n = max(n, 3)
    if p.kind == 'mfma':
        big = p.passes == 8
        if c.kind == 'mfma':
            if p.wr & c.srcab: n = max(n, 12 if big else 8)
            if p.wr & set(c.srcc):
                if not (list(c.srcc) and set(c.srcc) == p.wr and c.passes == p.passes): n = max(n, 10 if big else 6)
        elif c.kind in VALU_K or c.kind in VMEM_K or c.kind in DS_K:
            if p.wr & (c.rd | c.wr): n = max(n, 12 if big else 8)
            if set(p.srcc) & c.wr: n = max(n, 7 if big else 3)
    if p.kind == 'vm_st' and p.wide and set(p.srcc) & c.wr: n = max(n, 2 if c.kind in VALU_K else 1)
    if p.kind == 'salu' and 'm0' in p.wr and c.kind == 'dma': n = max(n, 1)
    return n

class Prog:
    def __init__(self): self.items = []
    def __call__(self, text, tag=None):
        for l in text.split('\n'):
            l = l.strip()
            if l: self.items.append(Ins(l, tag))
        return self
    def add(self, items): self.items.extend(items)
    def wait_tag(self, tag):
        i = Ins('s_waitcnt vmcnt(0)'); i.need = ('vmtag', tag); self.items.append(i)
    def wait_lds(self):
        i = Ins('s_waitcnt lgkmcnt(0)'); i.need = ('lgkm0',); self.items.append(i)

def finalize(items, stats=None):
    out = []; vm = []; lg = []; smem_pending = set()
    def emit_wait(vn, ln):
        parts = []
        if vn is not None: parts.append(f'vmcnt({vn})')
        if ln is not None: parts.append(f'lgkmcnt({ln})')
        if parts:
            if out and out[-1].kind == 'wait' and out[-1].need == 'auto':
                prev = out.pop().text
                m = re.search(r'vmcnt\((\d+)\)', prev)
                if m and vn is None: parts.insert(0, m.group(0))
                m = re.search(r'lgkmcnt\((\d+)\)', prev)
                if m and ln is None: parts.append(m.group(0))
            w = Ins('s_waitcnt ' + ' '.join(parts)); w.need = 'auto'; out.append(w)
    for it in items:
        vn = ln = None
        if it.kind == 'wait':
            if it.need and it.need[0] == 'vmtag':
                idx = [k for k, e in enumerate(vm) if e.tag == it.need[1]]
                if idx:
                    vn = len(vm) - 1 - idx[-1]; del vm[:idx[-1] + 1]; emit_wait(vn, None)
                continue
            if it.need and it.need[0] == 'lgkm0':
                if lg or smem_pending:
                    lg.clear(); smem_pending.clear(); emit_wait(None, 0)
                continue
            m = re.search(r'vmcnt\((\d+)\)', it.text)
            if m:
                k = int(m.group(1)); del vm[:max(0, len(vm) - k)]
            m = re.search(r'lgkmcnt\((\d+)\)', it.text)
            if m:
                k = int(m.group(1)); del lg[:max(0, len(lg) - k)]
                if k == 0: smem_pending.clear()
            out.append(it); continue
        touch = it.rd | it.wr
        idx = [k for k, e in enumerate(vm) if e.wr & touch]
        if idx: vn = len(vm) - 1 - idx[-1]
        if it.kind in VMEM_K and len(vm) >= 63 and (vn is None or vn > 61): vn = 61
        if touch & smem_pending: ln = 0
        else:
            idx2 = [k for k, e in enumerate(lg) if e.wr & touch]
            if idx2:
                ln = len(lg) - 1 - idx2[-1]
                if smem_pending: ln = 0
                ln = min(ln, 15)
        if it.kind == 'branch' and it.op != 's_endpgm' or it.kind == 'label':
            pass
        if vn is not None: del vm[:max(0, len(vm) - vn)]
        if ln is not None:
            del lg[:max(0, len(lg) - ln)]
            if ln == 0: smem_pending.clear()
        emit_wait(vn, ln)
        if it.kind in VMEM_K: vm.append(it)
        if it.kind in DS_K: lg.append(it)
        if it.kind == 'smem': smem_pending |= it.wr
        out.append(it)
    res = []
    for it in out:
        need = 0; dist = 0
        for p in reversed(res):
            if dist >= 13: break
            h = hazard(p, it)
            if h > dist: need = max(need, h - dist)
            dist += p.states()
        if need:
            res.append(Ins(f's_nop {need - 1}'))
            if stats is not None: stats['nops'] = stats.get('nops', 0) + need
        res.append(it)
    return res

def text_of(items):
    return '\n'.join((i.text if i.kind == 'label' else '    ' + i.text) for i in items) + '\n'

def interleave(main, fill, budget=6):
    out = []; fi = 0
    for g in main:
        out.extend(g)
        used = sum(i.slots for i in g if i.kind != 'mfma')
        while fi < len(fill) and used + fill[fi].slots <= budget:
            out.append(fill[fi]); used += fill[fi].slots; fi += 1
    return out, fill[fi:]

def I(text, tag=None):
    return [Ins(l.strip(), tag) for l in text.split('\n') if l.strip()]
```

```python
from gen import *

ACT, WF, KVP, KVF, WS_SIZE = 0, 0x900000, 0xB00000, 0xC00000, 0xD00000
LOG2E = 0x3fb8aa3b; NLOG2E = 0xbfb8aa3b; LN2 = 0x3f317218
SLOT = 28672; EXTRA = 5 * SLOT
K1_LDS = 163840

sX, sW, sWS, sT = 20, 24, 28, 32
sWave, sRb, sIdx, sXoff, sXl, sHU, sTmp, sTmp2, sOnes, sSc = 36, 37, 38, 39, 40, 41, 42, 43, 44, 45
sU0, sStb, sSt, sLn2, sEps, sKvb, sPitchW = 46, 50, 51, 52, 53, 54, 55
sM0, sM1 = 56, 58
sSide, sSideK, sSideN = 60, 61, 62
sC0 = 68
sF0, sF1 = 66, 67
XF = 16
ACC = 128
E = 192
P = 200
PK = 208
PV = 224
vLane, vXa, vXb, vXe, vXo, vWd, vWq, vSt = 1, 2, 3, 4, 5, 6, 7, 8
vA = 240
vS = 10
vSc, vBi = 14, 248
vT0, vT1 = 250, 252
NPOOL = 8

def vr(b, n=1): return f'v{b}' if n == 1 else f'v[{b}:{b+n-1}]'
def ar(b, n=1): return f'a{b}' if n == 1 else f'a[{b}:{b+n-1}]'
def sr(b, n=1): return f's{b}' if n == 1 else f's[{b}:{b+n-1}]'

def srd(p, dst, lo, size):
    p(f's_mov_b32 s{dst}, s{lo}\ns_mov_b32 s{dst+1}, s{lo+1}\ns_mov_b32 s{dst+2}, {size}\ns_mov_b32 s{dst+3}, 0x20000')

def prologue(p, opt):
    p(f'''
    s_cmp_ge_u32 s2, 256
    s_cbranch_scc1 L_k1_end
    s_load_dwordx4 s[4:7], s[0:1], 0
    s_load_dwordx2 s[8:9], s[0:1], 16
    s_load_dwordx4 s[12:15], s[0:1], 32
    s_load_dwordx2 s[18:19], s[0:1], 64
    v_and_b32 v{vLane}, 63, v0
    v_lshrrev_b32 v{vT0}, 6, v0
    s_and_b32 s{sTmp}, s2, 7
    v_readfirstlane_b32 s{sWave}, v{vT0}
    s_lshr_b32 s{sTmp2}, s2, 3
    s_and_b32 s{sRb}, s{sTmp}, 1
    s_lshl_b32 s{sRb}, s{sRb}, 3
    s_and_b32 s{sIdx}, s{sTmp2}, 7
    s_add_u32 s{sRb}, s{sRb}, s{sIdx}
    s_lshr_b32 s{sTmp2}, s{sTmp2}, 3
    s_and_b32 s{sIdx}, s{sTmp}, 6
    s_and_b32 s{sTmp}, s{sTmp2}, 1
    s_add_u32 s{sIdx}, s{sIdx}, s{sTmp}
    s_lshr_b32 s3, s{sTmp2}, 1
    s_lshl_b32 s{sXoff}, s{sRb}, 2
    s_add_u32 s{sXoff}, s{sXoff}, s{sWave}
    s_mul_i32 s{sStb}, s{sXoff}, {140*1024}
    s_mul_i32 s{sXoff}, s{sXoff}, {32*896}
    s_mul_i32 s{sXl}, s{sWave}, {SLOT}
    s_add_u32 s{sXl}, s{sXl}, {SLOT}
    s_mov_b32 s{sOnes}, 0x3f803f80
    v_lshrrev_b32 v{vT0}, 2, v{vLane}
    v_mul_u32_u24 v{vXa}, 896, v{vT0}
    v_lshrrev_b32 v{vT0}, 4, v{vLane}
    v_xor_b32 v{vT0}, v{vT0}, v{vLane}
    v_and_b32 v{vT0}, 3, v{vT0}
    v_lshl_add_u32 v{vXa}, v{vT0}, 4, v{vXa}
    v_add_u32 v{vXb}, {16*896}, v{vXa}
    s_waitcnt lgkmcnt(0)
    ''')
    srd(p, sX, 4, 2048 * 896)
    for sg in range(14):
        for g in range(2):
            p(f's_add_u32 m0, s{sXl}, {(2*sg+g)*1024 - 64*sg}')
            p(f'buffer_load_dwordx4 v{vXa if g == 0 else vXb}, s[{sX}:{sX+3}], s{sXoff} offen offset:{64*sg} lds', tag=f'x{sg}')
    srd(p, sWS, 18, WS_SIZE)
    p(f'''
    v_and_b32 v{vT0}, 31, v{vLane}
    v_lshrrev_b32 v{vT1}, 4, v{vT0}
    v_lshlrev_b32 v{vXe}, 10, v{vT1}
    v_and_b32 v{vT1}, 15, v{vLane}
    v_lshl_add_u32 v{vXe}, v{vT1}, 6, v{vXe}
    v_lshrrev_b32 v{vT1}, 2, v{vT1}
    v_lshrrev_b32 v{vT0}, 5, v{vLane}
    v_xor_b32 v{vT0}, v{vT0}, v{vT1}
    v_lshl_add_u32 v{vXe}, v{vT0}, 4, v{vXe}
    v_add_u32 v{vXe}, s{sXl}, v{vXe}
    v_xor_b32 v{vXo}, 32, v{vXe}
    v_lshlrev_b32 v{vSt}, 4, v{vLane}
    s_cmp_eq_u32 s3, 1
    s_cbranch_scc1 L_k1_ffn
    ''')

def w_lane_setup(p, pitch, dst, clamp6):
    p(f'''
    v_lshrrev_b32 v{vT0}, 3, v{vLane}
    v_mul_u32_u24 v{dst}, {pitch}, v{vT0}
    v_lshlrev_b32 v{vT0}, 1, v{vT0}
    v_and_b32 v{vT0}, 4, v{vT0}
    v_and_b32 v{vT1}, 7, v{vLane}
    v_xor_b32 v{vT0}, v{vT0}, v{vT1}''')
    if clamp6: p(f'v_min_u32 v{vT0}, 6, v{vT0}')
    p(f'v_lshl_add_u32 v{dst}, v{vT0}, 4, v{dst}')

def tr_lane(p, dst, win, rowsh=7, halfrows=8):
    p(f'''
    v_lshrrev_b32 v{vT0}, 5, v{vLane}
    v_mul_u32_u24 v{dst}, {halfrows*128}, v{vT0}
    v_bfe_u32 v{vT0}, v{vLane}, 2, 2
    v_lshl_add_u32 v{dst}, v{vT0}, 7, v{dst}
    v_lshrrev_b32 v{vT0}, 1, v{vT0}
    v_lshlrev_b32 v{vT0}, 6, v{vT0}
    v_bfe_u32 v{vT1}, v{vLane}, 4, 1
    v_lshlrev_b32 v{vT1}, 5, v{vT1}
    v_and_b32 v{vT0+1}, 3, v{vLane}
    v_lshl_add_u32 v{vT1}, v{vT0+1}, 3, v{vT1}''')
    if win: p(f'v_add_u32 v{vT1}, {win}, v{vT1}')
    p(f'''v_xor_b32 v{vT0}, v{vT0}, v{vT1}
    v_add_u32 v{dst}, v{dst}, v{vT0}''')

def hu_dma(hu, sunit, pitch, vaddr):
    L = []
    L += I(f's_mul_i32 s{sHU}, s{sWave}, {56*pitch}\ns_add_u32 s{sHU}, s{sHU}, s{sunit}\ns_mul_i32 s{sTmp2}, s{sWave}, 7168')
    for i in range(7):
        L += I(f's_add_u32 m0, s{sTmp2}, {(hu % 5)*SLOT + i*1024}')
        L += I(f's_add_u32 s{sTmp}, s{sHU}, {((hu & 1)*224 + 8*i)*pitch}')
        L += I(f'buffer_load_dwordx4 v{vaddr}, s[{sW}:{sW+3}], s{sTmp} offen lds', tag=f'hu{hu}')
    return L

def layernorm(p, sign_const):
    for k in range(4): p(f'v_mov_b32 v{vS+k}, 0')
    for sg in range(14):
        p.wait_tag(f'x{sg}')
        for o in range(2):
            ks = 2*sg + o
            p(f'ds_read_b128 {vr(XF+4*ks, 4)}, v{vXe if o == 0 else vXo} offset:{sg*2048}')
        if sg >= 1: stats(p, sg - 1)
    stats(p, 13)

def stats(p, sg):
    for r in range(8):
        x = XF + 8*sg + r
        p(f'v_dot2c_f32_bf16 v{vS + (r&1)}, s{sOnes}, v{x}')
        p(f'v_dot2c_f32_bf16 v{vS + 2 + (r&1)}, v{x}, v{x}')

def ln_finish(sign_const):
    p = Prog()
    p(f'''
    v_add_f32 v{vS}, v{vS}, v{vS+1}
    v_add_f32 v{vS+2}, v{vS+2}, v{vS+3}
    v_mov_b32 v{vS+1}, v{vS}
    v_mov_b32 v{vS+3}, v{vS+2}
    v_permlane32_swap_b32 v{vS}, v{vS+1}
    v_permlane32_swap_b32 v{vS+2}, v{vS+3}
    v_add_f32 v{vS}, v{vS}, v{vS+1}
    v_add_f32 v{vS+2}, v{vS+2}, v{vS+3}
    v_mul_f32 v{vS}, 0x3b124925, v{vS}
    v_mul_f32 v{vS+2}, 0x3b124925, v{vS+2}
    v_fma_f32 v{vS+2}, -v{vS}, v{vS}, v{vS+2}
    v_max_f32 v{vS+2}, 0, v{vS+2}
    v_add_f32 v{vS+2}, 0x3727c5ac, v{vS+2}
    v_rsq_f32 v{vS+2}, v{vS+2}
    s_mov_b32 s{sSc}, {sign_const}
    v_mul_f32 v{vSc}, s{sSc}, v{vS+2}
    v_mul_f32 v{vBi}, v{vS}, v{vSc}
    v_sub_f32 v{vBi}, 0, v{vBi}
    ''')
    for r in range(0, 112, 2):
        for k in range(2):
            x = XF + r + k; t = E + 2*k + 4*((r >> 1) & 1)
            p(f'v_lshlrev_b32 v{t}, 16, v{x}\nv_and_b32 v{t+1}, 0xffff0000, v{x}')
        for k in range(2):
            t = E + 2*k + 4*((r >> 1) & 1)
            p(f'v_pk_fma_f32 {vr(t,2)}, {vr(t,2)}, {vr(vSc,2)}, {vr(vBi,2)} op_sel_hi:[1,0,0]')
        for k in range(2):
            x = XF + r + k; t = E + 2*k + 4*((r >> 1) & 1)
            p(f'v_cvt_pk_bf16_f32 v{x}, v{t}, v{t+1}')
    return p.items

class Gemm:
    LOOK = 4
    def __init__(self): self.ops = []
    def unit(self, hu0, wins, accs, transposed):
        for kh in range(2):
            for ks in range(14):
                for w, a in zip(wins, accs):
                    self.ops.append((hu0 + kh, ks, w, 14*kh + ks, a, kh == 0 and ks == 0, transposed))
    def read(self, n):
        hu, ks, areg, _, _, _, _ = self.ops[n]
        b = (n % NPOOL) * 4
        off = ((hu % 5) & 1) * SLOT + ks * 2048
        base = areg + 2 * ((hu % 5) >> 1)
        return I(f'ds_read_b64_tr_b16 {ar(b,2)}, v{base} offset:{off}\nds_read_b64_tr_b16 {ar(b+2,2)}, v{base} offset:{off+512}')
    def mfma(self, n):
        _, _, _, xks, acc, first, tr = self.ops[n]
        w = ar((n % NPOOL) * 4, 4); x = vr(XF + 4*xks, 4)
        a, b = (w, x) if tr else (x, w)
        return I(f'v_mfma_f32_32x32x16_bf16 {vr(acc,16)}, {a}, {b}, {"0" if first else vr(acc,16)}')
    def groups(self, lo, hi, extra):
        G = []
        for n in range(lo, hi):
            g = self.mfma(n) + extra.get(n, [])
            if n + self.LOOK < len(self.ops): g += self.read(n + self.LOOK)
            G.append(g)
        return G

def barrier_items(hu):
    p = Prog(); p.wait_tag(f'hu{hu}'); p('s_barrier'); return p.items

def act_epilogue(acc, kind, sks, koff):
    L = []
    for t in range(2):
        a = acc + 8*t; pk = P + 4*t
        L += act_ops(a, kind)
        for j in range(4): L += I(f'v_cvt_pk_bf16_f32 v{pk+j}, v{E+2*j}, v{E+2*j+1}')
        L += I(f's_add_u32 s{sSt}, s{sks}, {(koff + t)*1024}')
        L += I(f'buffer_store_dwordx4 {vr(pk,4)}, v{vSt}, s[{sWS}:{sWS+3}], s{sSt} offen {STFLAG[0]}', tag='st')
    return L

STFLAG = ['']
def act_ops(a, kind):
    L = []
    if kind == 'silu':
        for j in range(8): L += I(f'v_exp_f32 v{E+j}, v{a+j}')
        for j in range(8): L += I(f'v_add_f32 v{E+j}, 1.0, v{E+j}')
        for j in range(8): L += I(f'v_rcp_f32 v{E+j}, v{E+j}')
        for j in range(8): L += I(f'v_mul_f32 v{E+j}, v{a+j}, v{E+j}')
    else:
        for j in range(8): L += I(f'v_exp_f32_e64 v{E+j}, v{a+j} clamp')
        for j in range(8): L += I(f'v_max_f32 v{a+j}, 0, v{a+j}')
        for j in range(8): L += I(f'v_fma_f32 v{a+j}, v{a+j}, s{sLn2}, v{vEps}')
        for j in range(8): L += I(f'v_add_f32 v{E+j}, v{a+j}, v{E+j}')
    return L
vEps = 9

def addr_bases(p, dst, lane):
    p(f'v_mov_b32 v{dst}, v{lane}\nv_add_u32 v{dst+2}, {2*SLOT}, v{lane}\nv_add_u32 v{dst+4}, {4*SLOT}, v{lane}')

def run_unit(p, G, lo, hi, fill, extra, budget=6):
    body, rest = interleave(G.groups(lo, hi, extra), fill, budget)
    p.add(body); p.add(rest)

def ffn_role(p, opt):
    p('L_k1_ffn:')
    srd(p, sW, 12, 448 * 3584)
    p(f'''
    s_mul_i32 s{sTmp}, s{sIdx}, 448
    s_and_b32 s{sTmp2}, s{sIdx}, 1
    s_lshl_b32 s{sSc}, s{sTmp2}, 6
    s_add_u32 s{sU0}, s{sTmp}, s{sSc}
    s_add_u32 s{sU0+1}, s{sU0}, 128
    s_add_u32 s{sU0+2}, s{sU0}, 256
    s_add_u32 s{sU0+3}, s{sTmp}, 384
    s_mul_i32 s{sEps}, s{sTmp2}, 448
    s_sub_u32 s{sU0+3}, s{sU0+3}, s{sEps}
    s_mul_i32 s{sTmp}, s{sIdx}, {14*1024}
    s_add_u32 s{sTmp}, s{sTmp}, s{sStb}
    s_lshl_b32 s{sEps}, s{sTmp2}, 11
    s_add_u32 s{sC0}, s{sTmp}, s{sEps}
    s_add_u32 s{sC0+1}, s{sC0}, 4096
    s_add_u32 s{sC0+2}, s{sC0}, 8192
    s_mul_i32 s{sEps}, s{sTmp2}, {12*1024}
    s_add_u32 s{sC0+3}, s{sTmp}, {12*1024}
    s_sub_u32 s{sC0+3}, s{sC0+3}, s{sEps}
    ''')
    w_lane_setup(p, 3584, vWd, False)
    p.add(hu_dma(0, sU0, 3584, vWd))
    tr_lane(p, vT1+1, 0)
    addr_bases(p, vA, vT1+1)
    p(f'v_xor_b32 v{vT0}, 64, v{vT1+1}')
    addr_bases(p, vA+1, vT0)
    p(f'v_xor_b32 v{vA+6}, s{sSc}, v{vT1+1}')
    layernorm(p, NLOG2E)
    p.wait_lds(); p.add(barrier_items(0))
    for hu in range(1, 5): p.add(hu_dma(hu, sU0 + hu//2, 3584, vWd))
    p.add(ln_finish(NLOG2E))
    G = Gemm()
    for u in range(3): G.unit(2*u, [vA, vA+1], [ACC + 32*(u&1), ACC + 32*(u&1) + 16], True)
    G.unit(6, [vA+6], [ACC + 32], True)
    starts = [0, 28, 56, 84, 112, 140, 168, 182, 196]
    extra = {}
    for hu in range(1, 8):
        n = starts[hu] - G.LOOK - 2
        it = barrier_items(hu)
        if 5 <= hu + 3 <= 7: it += hu_dma(hu + 3, sU0 + (hu+3)//2, 3584, vWd)
        extra[n] = it
    p(f'v_add_u32 v{vA+8}, {2*SLOT}, v{vA+6}')
    for n in range(G.LOOK): p.add(G.read(n))
    fill = []
    for u in range(4):
        lo, hi = starts[2*u], starts[2*u+2]
        run_unit(p, G, lo, hi, fill, extra)
        acc = ACC + 32*(u&1)
        fill = act_epilogue(acc, 'silu', sC0 + u, 0)
        if u < 3: fill += act_epilogue(acc + 16, 'silu', sC0 + u, 2)
    p.add(fill)
    p('L_k1_end:\ns_endpgm')

def att_role(p, opt):
    srd(p, sW, 6, 448 * 2688)
    p(f'''
    s_mul_i32 s{sTmp}, s{sIdx}, 112
    s_add_u32 s{sU0}, s{sTmp}, 896
    s_add_u32 s{sU0+1}, s{sTmp}, 1792
    s_min_u32 s{sTmp}, s{sIdx}, 6
    s_lshl_b32 s{sU0+2}, s{sTmp}, 7
    s_lshl_b32 s{sTmp}, s{sTmp}, 12
    s_add_u32 s{sC0}, s{sStb}, s{sTmp}
    s_add_u32 s{sC0}, s{sC0}, {112*1024}
    s_lshl_b32 s{sKvb}, s{sRb}, 3
    s_add_u32 s{sKvb}, s{sKvb}, s{sIdx}
    s_lshl_b32 s{sSide}, s{sKvb}, 2
    s_add_u32 s{sSide}, s{sSide}, s{sWave}
    s_lshl_b32 s{sSide}, s{sSide}, 1
    s_lshl_b32 s{sKvb}, s{sKvb}, 13
    s_lshl_b32 s{sTmp}, s{sWave}, 11
    s_add_u32 s{sKvb}, s{sKvb}, s{sTmp}
    s_add_u32 s{sKvb}, s{sKvb}, {KVP}
    s_mov_b32 s{sLn2}, {LN2}
    v_mov_b32 v{vEps}, 0x358637bd
    ''')
    w_lane_setup(p, 2688, vWd, True)
    p.add(hu_dma(0, sU0, 2688, vWd))
    w_lane_setup(p, 2688, vWq, False)
    tr_lane(p, vT1+1, 0)
    addr_bases(p, vA, vT1+1)
    tr_lane(p, vT1+1, 48)
    addr_bases(p, vA+1, vT1+1)
    p(f'''
    v_and_b32 v{vT0}, 31, v{vLane}
    v_cmp_eq_u32 s[{sM0}:{sM0+1}], 28, v{vT0}
    v_cmp_eq_u32 s[{sM1}:{sM1+1}], 0, v{vT0}
    ''')
    layernorm(p, LOG2E)
    p.wait_lds(); p.add(barrier_items(0))
    for hu in range(1, 4): p.add(hu_dma(hu, sU0 + hu//2, 2688, vWd))
    p.add(hu_dma(4, sU0 + 2, 2688, vWq))
    p.add(ln_finish(LOG2E))
    vQ = vXa
    G = Gemm()
    G.unit(0, [vA, vA+1], [ACC, ACC+16], False)
    G.unit(2, [vA, vA+1], [ACC+32, ACC+48], False)
    G.unit(4, [vA, vA+1], [ACC, ACC+16], True)
    starts = [0, 28, 56, 84, 112, 140, 168]
    extra = {}
    for hu in range(1, 6):
        n = starts[hu] - G.LOOK - 2
        it = barrier_items(hu)
        if hu == 2: it += hu_dma(5, sU0 + 2, 2688, vWq) + side_dma()
        extra[n] = it
    fix = I(f'v_xor_b32 v{vA+5}, 64, v{vA+4}\nv_xor_b32 v{vA+1}, 64, v{vA}')
    extra[starts[4] - G.LOOK - 1] = fix
    for n in range(G.LOOK): p.add(G.read(n))
    run_unit(p, G, 0, 56, [], extra)
    fill = []
    for hh in range(2):
        for t in range(2):
            a = ACC + 16*hh + 8*t
            fill += act_ops(a, 'phi')
            for j in range(4): fill += I(f'v_cvt_pk_bf16_f32 v{PK+8*hh+4*t+j}, v{E+2*j}, v{E+2*j+1}')
    run_unit(p, G, 56, 112, fill, extra)
    fill = []
    vOne = E
    fill += I(f'v_mov_b32 v{vOne}, s{sOnes}\nv_mov_b32 v{vOne+1}, 0')
    for hh in range(2):
        a = ACC + 32 + 16*hh; m = sM0 if hh == 0 else sM1
        for j in range(8): fill += I(f'v_cvt_pk_bf16_f32 v{PV+8*hh+j}, v{a+2*j}, v{a+2*j+1}')
        for j in range(8): fill += I(f'v_cndmask_b32 v{PV+8*hh+j}, v{PV+8*hh+j}, v{vOne}, s[{m}:{m+1}]')
    for hh in range(2):
        a = ACC + 32 + 16*hh
        fill += I(f'v_mfma_f32_32x32x16_bf16 {vr(a,16)}, {vr(PK+8*hh,4)}, {vr(PV+8*hh,4)}, 0')
    for hh in range(2):
        a = ACC + 32 + 16*hh
        fill += I(f'v_mfma_f32_32x32x16_bf16 {vr(a,16)}, {vr(PK+8*hh+4,4)}, {vr(PV+8*hh+4,4)}, {vr(a,16)}')
    vEx = vXb
    fill += I(f'''s_lshl_b32 s{sF0}, s{sWave}, 13
    s_add_u32 s{sF0}, s{sF0}, {SLOT}
    v_add_u32 v{vEx}, s{sF0}, v{vSt}
    s_mov_b32 s{sM0}, 0
    s_mov_b32 s{sM0+1}, -1
    s_mov_b32 s{sM1}, -1
    s_mov_b32 s{sM1+1}, 0''')
    fill += side_setup()
    for j in range(4): fill += I(f'v_cndmask_b32 v{ACC+32+12+j}, v{ACC+32+12+j}, v{vOne+1}, s[{sM0}:{sM0+1}]')
    for j in range(4): fill += I(f'v_cndmask_b32 v{ACC+48+j}, v{ACC+48+j}, v{vOne+1}, s[{sM1}:{sM1+1}]')
    for u in range(8): fill += I(f'ds_write_b128 v{vEx}, {vr(ACC+32+4*u,4)} offset:{u*1024}')
    run_unit(p, G, 112, 140, fill, extra)
    q = Prog(); q.wait_lds(); q('s_barrier')
    extra[142] = q.items
    q = Prog()
    q(f's_lshl_b32 s{sF0}, s{sWave}, 11\ns_add_u32 s{sF0}, s{sF0}, {SLOT}\nv_add_u32 v{vEx}, s{sF0}, v{vSt}')
    for w in range(4):
        for i in range(2): q(f'ds_read_b128 {vr(ACC+32+8*w+4*i,4)}, v{vEx} offset:{w*8192 + i*1024}')
    q.add(side_finish())
    for w in range(1, 4):
        for j in range(8): q(f'v_add_f32 v{ACC+32+j}, v{ACC+32+j}, v{ACC+32+8*w+j}')
    for i in range(2): q(f'buffer_store_dwordx4 {vr(ACC+32+4*i,4)}, v{vSt}, s[{sWS}:{sWS+3}], s{sKvb} offen offset:{i*1024} {STFLAG[0]}', tag='st')
    run_unit(p, G, 140, 143, [], extra)
    run_unit(p, G, 143, 168, q.items, extra)
    p.add(act_epilogue(ACC, 'phi', sC0, 0))
    p.add(act_epilogue(ACC + 16, 'phi', sC0, 2))
    p('s_endpgm')

def side_dma():
    L = []
    for i in range(2):
        L += I(f'''s_add_u32 s{sTmp}, s{sSide}, {i}
        s_min_u32 s{sTmp}, s{sTmp}, 979
        s_mul_hi_u32 s{sSideK+2*i}, s{sTmp}, 0x24924925
        s_mul_i32 s{sTmp2}, s{sSideK+2*i}, 7
        s_sub_u32 s{sSideN+2*i}, s{sTmp}, s{sTmp2}
        s_mov_b32 s{sT+2}, {448*896}
        s_cmp_lt_u32 s{sSideK+2*i}, 112
        s_cselect_b32 s{sT}, s14, s8
        s_cselect_b32 s{sT+1}, s15, s9
        s_cselect_b32 s{sT+2}, {1792*896}, s{sT+2}
        s_mov_b32 s{sT+3}, 0x20000
        s_cselect_b32 s{sTmp}, 0, 112
        s_sub_u32 s{sTmp}, s{sSideK+2*i}, s{sTmp}
        s_mul_i32 s{sTmp}, s{sTmp}, {16*896}
        s_lshl_b32 s{sTmp2}, s{sSideN+2*i}, 7
        s_add_u32 s{sTmp}, s{sTmp}, s{sTmp2}
        s_lshl_b32 s{sTmp2}, s{sWave}, 12''')
        for h in range(2):
            L += I(f'''s_add_u32 m0, s{sTmp2}, {EXTRA + i*2048 + h*1024}
            s_add_u32 s{sHU}, s{sTmp}, {h*8*896}
            buffer_load_dwordx4 v{vSd}, s[{sT}:{sT+3}], s{sHU} offen lds''', tag='side')
    return L
vSd = 254
def side_setup():
    p = Prog()
    tr_lane(p, vT1+1, 0, halfrows=4)
    p(f's_lshl_b32 s{sF0}, s{sWave}, 12\ns_add_u32 s{sF0}, s{sF0}, {EXTRA}\nv_add_u32 v{vXe}, s{sF0}, v{vT1+1}\nv_xor_b32 v{vXo}, 64, v{vXe}')
    return p.items
def side_finish():
    p = Prog(); p.wait_tag('side')
    for i in range(2):
        for cc in range(2):
            b = PK + 8*i + 4*cc
            for pp in range(2): p(f'ds_read_b64_tr_b16 {vr(b+2*pp,2)}, v{vXe if cc == 0 else vXo} offset:{i*2048 + pp*1024}')
    for i in range(2):
        p(f'''s_mul_i32 s{sF0}, s{sSideN+2*i}, {2*140*1024}
        s_lshl_b32 s{sF1}, s{sSideK+2*i}, 10
        s_add_u32 s{sF0}, s{sF0}, s{sF1}
        s_add_u32 s{sF0}, s{sF0}, {WF}
        s_add_u32 s{sF1}, s{sF0}, {140*1024}''')
        p(f'buffer_store_dwordx4 {vr(PK+8*i,4)}, v{vSt}, s[{sWS}:{sWS+3}], s{sF0} offen {STFLAG[0]}', tag='st')
        p(f'buffer_store_dwordx4 {vr(PK+8*i+4,4)}, v{vSt}, s[{sWS}:{sWS+3}], s{sF1} offen {STFLAG[0]}', tag='st')
    return p.items

def build_k1(opt):
    STFLAG[0] = opt.get('k1_store', '')
    pro = Prog(); prologue(pro, opt)
    a = Prog(); w_lane_setup(a, 896, vSd, False); att_role(a, opt)
    f = Prog(); ffn_role(f, opt)
    st = {}
    A = finalize(pro.items + a.items, st); F = finalize(pro.items + f.items, st)
    k = [i for i, x in enumerate(F) if x.text.startswith('L_k1_ffn')][0]
    assert [x.text for x in A[:k]] == [x.text for x in F[:k]]
    print('k1 nop states', st, 'instr', len(A), len(F) - k)
    return text_of(A) + text_of(F[k:])
```

```python
from gen import *
from k1 import ACT, WF, KVP, KVF, WS_SIZE, vr, ar, sr, srd

K2_LDS = 139264
EXW = 17408

def build_kr(opt):
    p = Prog()
    p(f'''
    s_cmp_ge_u32 s2, 8
    s_cbranch_scc1 L_kr_end
    s_load_dwordx2 s[4:5], s[0:1], 64
    v_lshrrev_b32 v2, 6, v0
    v_and_b32 v1, 63, v0
    v_lshlrev_b32 v1, 4, v1
    v_readfirstlane_b32 s3, v2
    s_lshl_b32 s6, s2, 13
    s_lshl_b32 s7, s3, 11
    s_add_u32 s6, s6, s7
    s_add_u32 s6, s6, {KVP}
    s_lshl_b32 s7, s2, 12
    s_lshl_b32 s3, s3, 10
    s_add_u32 s7, s7, s3
    s_add_u32 s7, s7, {KVF}
    s_waitcnt lgkmcnt(0)
    ''')
    srd(p, 8, 4, WS_SIZE)
    for rb in range(16):
        for i in range(2): p(f'buffer_load_dwordx4 {vr(8+8*rb+4*i,4)}, v1, s[8:11], s6 offen offset:{i*1024}')
        p('s_add_u32 s6, s6, 65536')
    for rb in range(1, 16):
        for j in range(8): p(f'v_add_f32 v{8+j}, v{8+j}, v{8+8*rb+j}')
    for j in range(4): p(f'v_cvt_pk_bf16_f32 v{4+j}, v{8+2*j}, v{9+2*j}')
    p('buffer_store_dwordx4 v[4:7], v1, s[8:11], s7 offen')
    p('L_kr_end:\ns_endpgm')
    return text_of(finalize(p.items))

sWS, sX, sO = 20, 24, 28
sWave, sRb, sCb, sKs, sT, sT2, sAtt, sRow, sC = 32, 33, 34, 35, 36, 37, 38, 39, 40
sHi = 42
vLane, vA0, vA1, vW0, vW1, vL16, vExS, vExF, vRdS, vRdF, vRow, vT0, vT1, vEps = 1, 2, 3, 4, 5, 6, 7, 8, 9, 10, 11, 12, 13, 14
PQ, WO, O, NUM, SS, XR, TM = 16, 72, 128, 184, 216, 232, 240
AF, AS, KV, POOL = 0, 64, 128, 160
DEPTH = 6

def build_k2(opt):
    p = Prog()
    p(f'''
    s_cmp_ge_u32 s2, 224
    s_cbranch_scc1 L_k2_end
    s_load_dwordx2 s[4:5], s[0:1], 0
    s_load_dwordx2 s[6:7], s[0:1], 48
    s_load_dwordx2 s[8:9], s[0:1], 64
    v_and_b32 v{vLane}, 63, v0
    v_lshrrev_b32 v{vT0}, 6, v0
    s_and_b32 s{sT}, s2, 7
    v_readfirstlane_b32 s{sWave}, v{vT0}
    s_lshr_b32 s{sT2}, s2, 3
    s_lshr_b32 s{sCb}, s{sT2}, 2
    s_and_b32 s{sT2}, s{sT2}, 3
    s_lshl_b32 s{sRb}, s{sT}, 2
    s_add_u32 s{sRb}, s{sRb}, s{sT2}
    s_mul_i32 s{sKs}, s{sT2}, 7
    s_add_u32 s{sKs}, s{sKs}, s{sCb}
    s_lshl_b32 s{sKs}, s{sKs}, 10
    v_lshlrev_b32 v{vL16}, 4, v{vLane}
    s_mul_i32 s{sT}, s{sRb}, {280*1024}
    s_mul_i32 s{sT2}, s{sWave}, {28*1024}
    s_add_u32 s{sT}, s{sT}, s{sT2}
    v_add_u32 v{vA0}, s{sT}, v{vL16}
    v_add_u32 v{vA1}, {140*1024}, v{vA0}
    s_mul_i32 s{sT}, s{sCb}, {280*1024}
    s_add_u32 s{sT}, s{sT}, s{sT2}
    s_add_u32 s{sT}, s{sT}, {WF}
    v_add_u32 v{vW0}, s{sT}, v{vL16}
    v_add_u32 v{vW1}, {140*1024}, v{vW0}
    s_mul_i32 s{sAtt}, s{sWave}, {21*1024}
    s_sub_u32 s{sAtt}, {112*1024}, s{sAtt}
    s_waitcnt lgkmcnt(0)
    ''')
    srd(p, sWS, 8, WS_SIZE)
    ws = f's[{sWS}:{sWS+3}]'
    def att_load(dst, va, i):
        p(f's_add_u32 s{sT}, s{sAtt}, {i*1024}\nbuffer_load_dwordx4 {dst}, v{va}, {ws}, s{sT} offen')
    for i in range(7): att_load(vr(PQ+4*i, 4), vA0, i)
    p(f's_lshl_b32 s{sT2}, s{sWave}, 13\ns_add_u32 s{sT2}, s{sT2}, {KVF}')
    for i in range(8):
        if i == 4: p(f's_add_u32 s{sT2}, s{sT2}, 4096')
        p(f'buffer_load_dwordx4 {ar(KV+4*i,4)}, v{vL16}, {ws}, s{sT2} offen offset:{(i%4)*1024}')
    for i in range(7): att_load(vr(PQ+28+4*i, 4), vA1, i)
    for i in range(7):
        att_load(vr(WO+4*i, 4), vW0, i); att_load(vr(WO+28+4*i, 4), vW1, i)
    def step_loads(n):
        b = POOL + 16*(n % DEPTH)
        q = Prog()
        for j, va in enumerate((vA0, vW0, vW1, vA1)):
            q(f'buffer_load_dwordx4 {ar(b+4*j,4)}, v{va}, {ws}, s{sKs} offen')
        q(f's_add_u32 s{sKs}, s{sKs}, 1024\ns_cmp_eq_u32 s{sKs}, {28*1024}\ns_cselect_b32 s{sKs}, 0, s{sKs}')
        return q.items
    srd(p, sX, 4, 2048*896); srd(p, sO, 6, 2048*896)
    p(f'''
    v_lshrrev_b32 v{vT0}, 3, v{vLane}
    v_mul_u32_u24 v{vRow}, 896, v{vT0}
    v_mul_u32_u24 v{vRdS}, 272, v{vT0}
    v_and_b32 v{vT0}, 7, v{vLane}
    v_lshl_add_u32 v{vRow}, v{vT0}, 4, v{vRow}
    v_lshl_add_u32 v{vRdS}, v{vT0}, 5, v{vRdS}
    s_mul_i32 s{sT}, s{sWave}, {16*272}
    v_add_u32 v{vRdS}, s{sT}, v{vRdS}
    v_add_u32 v{vRdF}, {4*EXW}, v{vRdS}
    s_lshl_b32 s{sRow}, s{sRb}, 2
    s_add_u32 s{sRow}, s{sRow}, s{sWave}
    s_mul_i32 s{sRow}, s{sRow}, {16*896}
    s_lshl_b32 s{sT}, s{sCb}, 7
    s_add_u32 s{sRow}, s{sRow}, s{sT}
    s_add_u32 s{sRow+2}, s{sRow}, {8*896}
    v_and_b32 v{vT0}, 31, v{vLane}
    v_mul_u32_u24 v{vExS}, 272, v{vT0}
    v_lshrrev_b32 v{vT0}, 5, v{vLane}
    v_lshl_add_u32 v{vExS}, v{vT0}, 4, v{vExS}
    s_mul_i32 s{sT}, s{sWave}, {EXW}
    v_add_u32 v{vExS}, s{sT}, v{vExS}
    v_add_u32 v{vExF}, {4*EXW}, v{vExS}
    s_mov_b32 s{sHi}, 0
    s_mov_b32 s{sHi+1}, -1
    s_mov_b32 s{sC}, 0xbef5fdf0
    v_mov_b32 v{vEps}, 0x358637bd
    ''')
    for n in range(DEPTH): p.add(step_loads(n))
    WS = (0, 6, 14, 20)
    for mt in range(2):
        for pr in range(2):
            for hh in range(2):
                d = NUM + 16*hh; w = PQ + 28*mt + WS[2*pr+hh]; k = KV + 16*pr + 8*hh
                p(f'v_mfma_f32_32x32x16_bf16 {vr(d,16)}, {ar(k,4)}, {vr(w,4)}, 0')
            for hh in range(2):
                d = NUM + 16*hh; w = PQ + 28*mt + WS[2*pr+hh]; k = KV + 16*pr + 8*hh
                p(f'v_mfma_f32_32x32x16_bf16 {vr(d,16)}, {ar(k+4,4)}, {vr(w+4,4)}, {vr(d,16)}')
            p(f'''v_mov_b32 v{vT0}, v{NUM+12}
            v_mov_b32 v{vT1}, v{NUM+16}
            v_permlane32_swap_b32 v{NUM+12}, v{vT0}
            v_permlane32_swap_b32 v{vT1}, v{NUM+16}
            v_add_f32 v{vT0}, v{vT0}, v{vEps}
            v_add_f32 v{vT1}, v{vT1}, v{vEps}
            v_rcp_f32 v{vT0}, v{vT0}
            v_rcp_f32 v{vT1}, v{vT1}''')
            for j in range(16): p(f'v_mul_f32 v{NUM+j}, v{NUM+j}, v{vT0}')
            for j in range(16): p(f'v_mul_f32 v{NUM+16+j}, v{NUM+16+j}, v{vT1}')
            o = O + 28*mt + 14*pr
            for j in range(6): p(f'v_cvt_pk_bf16_f32 v{o+j}, v{NUM+2*j}, v{NUM+2*j+1}')
            for j in range(2):
                p(f'v_cvt_pk_bf16_f32 v{TM+j}, v{NUM+12+2*j}, v{NUM+13+2*j}')
                p(f'v_cvt_pk_bf16_f32 v{TM+2+j}, v{NUM+16+2*j}, v{NUM+17+2*j}')
            for j in range(2): p(f'v_cndmask_b32 v{o+6+j}, v{TM+j}, v{TM+2+j}, s[{sHi}:{sHi+1}]')
            for j in range(6): p(f'v_cvt_pk_bf16_f32 v{o+8+j}, v{NUM+20+2*j}, v{NUM+21+2*j}')
    for i in range(7):
        for mt in range(2):
            for nt in range(2):
                a = AS + 16*(2*mt+nt)
                p(f'v_mfma_f32_32x32x16_bf16 {ar(a,16)}, {vr(WO+28*nt+4*i,4)}, {vr(O+28*mt+4*i,4)}, {"0" if i == 0 else ar(a,16)}')
    for i in range(2): p(f'buffer_load_dwordx4 {vr(XR+4*i,4)}, v{vRow}, s[{sX}:{sX+3}], s{sRow+2*i} offen')
    def ex_write(acc, va):
        L = []
        for mt in range(2):
            for nt in range(2):
                for q in range(4):
                    L += I(f'ds_write_b128 v{va}, {ar(acc+16*(2*mt+nt)+4*q,4)} offset:{mt*32*272 + nt*128 + q*32}')
        return L
    def ex_read(dst, tmp, va):
        L = []
        for part in range(4):
            d = dst if part == 0 else tmp + 16*(part-1)
            for i in range(2):
                for h in range(2): L += I(f'ds_read_b128 {vr(d+8*i+4*h,4)}, v{va} offset:{part*EXW + i*8*272 + h*16}')
        return L
    groups = []
    for n in range(28):
        b = POOL + 16*(n % DEPTH)
        for j, (mt, nt) in enumerate(((0,0),(0,1),(1,1),(1,0))):
            a = AF + 16*(2*mt+nt)
            g = I(f'v_mfma_f32_32x32x16_bf16 {ar(a,16)}, {ar(b+4+4*nt,4)}, {ar(b+12*mt,4)}, {"0" if n == 0 else ar(a,16)}')
            if j == 3 and n + DEPTH < 28: g += step_loads(n + DEPTH)
            groups.append(g)
    body, rest = interleave(groups[:24], ex_write(AS, vExS), 2)
    p.add(body); p.add(rest)
    body, _ = interleave(groups[24:32], [], 2)
    p.add(body)
    p.wait_lds(); p('s_barrier')
    fill = ex_read(SS, PQ, vRdS)
    for j in range(16): fill += I(f'v_add_f32 v{SS+j}, v{SS+j}, v{PQ+j}\nv_add_f32 v{PQ+16+j}, v{PQ+16+j}, v{PQ+32+j}')
    for j in range(16): fill += I(f'v_add_f32 v{SS+j}, v{SS+j}, v{PQ+16+j}')
    for j in range(16): fill += I(f'v_mul_f32 v{SS+j}, s{sC}, v{SS+j}')
    XU = WO
    for j in range(8): fill += I(f'v_lshlrev_b32 v{XU+2*j}, 16, v{XR+j}\nv_and_b32 v{XU+2*j+1}, 0xffff0000, v{XR+j}')
    body, rest = interleave(groups[32:], fill, 4)
    p.add(body); p.add(rest)
    p.add(ex_write(AF, vExF))
    p.wait_lds(); p('s_barrier')
    FF = NUM
    p.add(ex_read(FF, PQ, vRdF))
    for j in range(0, 16, 2):
        p(f'v_pk_add_f32 {vr(FF+j,2)}, {vr(FF+j,2)}, {vr(PQ+j,2)}')
        p(f'v_pk_add_f32 {vr(PQ+16+j,2)}, {vr(PQ+16+j,2)}, {vr(PQ+32+j,2)}')
    ET = NUM + 16
    for i in range(2):
        js = range(8*i, 8*i+8)
        for j in js[::2]: p(f'v_pk_add_f32 {vr(FF+j,2)}, {vr(FF+j,2)}, {vr(PQ+16+j,2)}')
        for j in js: p(f'v_exp_f32 v{ET+j}, v{FF+j}')
        for j in js[::2]: p(f'v_pk_add_f32 {vr(ET+j,2)}, {vr(ET+j,2)}, 1.0 op_sel_hi:[1,0]')
        for j in js: p(f'v_rcp_f32 v{ET+j}, v{ET+j}')
        for j in js[::2]: p(f'v_pk_mul_f32 {vr(FF+j,2)}, {vr(FF+j,2)}, {vr(ET+j,2)}')
        for j in js[::2]: p(f'v_pk_fma_f32 {vr(FF+j,2)}, {vr(FF+j,2)}, {vr(SS+j,2)}, {vr(XU+j,2)}')
        for j in js[::2]: p(f'v_cvt_pk_bf16_f32 v{XR+j//2}, v{FF+j}, v{FF+j+1}')
        p(f'buffer_store_dwordx4 {vr(XR+4*i,4)}, v{vRow}, s[{sO}:{sO+3}], s{sRow+2*i} offen')
    p('L_k2_end:\ns_endpgm')
    st = {}
    R = finalize(p.items, st)
    print('k2 nop states', st, 'instr', len(R))
    return text_of(R)
```

```python
import sys
sys.path.insert(0, 'work')
from asmlib import *
import k1, k2
NAME = 'recurrent_scan__linear_attn_block__dense_activation_silu__prompt'

def build(opt, extra_empty=0):
    ref = open(f'cdna_kernels/{NAME}.s.ref').read().split('\n')
    head = [l for l in ref if l.startswith(';') and 'launch' not in l and 'grid=' not in l]
    launches = [f'; @launch kernel=k1_kernel grid=(256,1,1) block=(256,1,1) lds={k1.K1_LDS}',
                f'; @launch kernel=kr_kernel grid=(8,1,1) block=(256,1,1) lds=0']
    launches += ['; @launch kernel=e_kernel grid=(1,1,1) block=(64,1,1) lds=0'] * extra_empty
    launches += [f'; @launch kernel=k2_kernel grid=(224,1,1) block=(256,1,1) lds={k2.K2_LDS}']
    t = header(head + launches)
    t += kernel_begin('k1_kernel') + k1.build_k1(opt)
    t += kernel_begin('kr_kernel') + k2.build_kr(opt)
    if extra_empty: t += kernel_begin('e_kernel') + '    s_endpgm\n'
    t += kernel_begin('k2_kernel') + k2.build_k2(opt)
    t += '.section .rodata,"a"\n'
    t += descriptor('k1_kernel', 256, 32)
    t += descriptor('kr_kernel', 136)
    if extra_empty: t += descriptor('e_kernel', 8)
    t += descriptor('k2_kernel', 256, 256)
    return t

if __name__ == '__main__':
    out = sys.argv[1] if len(sys.argv) > 1 else f'cdna_kernels/{NAME}.s'
    opt = dict(a.split('=') for a in sys.argv[2:])
    open(out, 'w').write(build(opt, int(opt.get('empty', 0))))
    print('wrote', out)
```

```python
import re

TRANS = ('v_exp_f32', 'v_log_f32', 'v_rcp_f32', 'v_rsq_f32', 'v_sqrt_f32', 'v_sin_f32', 'v_cos_f32', 'v_rcp_iflag_f32')
REG_RE = re.compile(r'^([vas])(\d+)$')
RNG_RE = re.compile(r'^([vas])\[(\d+):(\d+)\]$')

def regs_of(op):
    op = op.strip()
    m = re.match(r'^-?(?:abs\()?\|?([^|)]*)\|?\)?$', op)
    if m: op = m.group(1)
    m = REG_RE.match(op)
    if m: return [op]
    m = RNG_RE.match(op)
    if m: return [f'{m.group(1)}{i}' for i in range(int(m.group(2)), int(m.group(3)) + 1)]
    if op == 'vcc': return ['vcc']
    if op in ('vcc_lo', 'vcc_hi'): return ['vcc']
    if op == 'exec' or op in ('exec_lo', 'exec_hi'): return ['exec']
    if op == 'm0': return ['m0']
    return []

def split_ops(s):
    out, depth, cur = [], 0, ''
    for ch in s:
        if ch in '[(': depth += 1
        if ch in '])': depth -= 1
        if ch == ',' and depth == 0:
            out.append(cur.strip()); cur = ''
        else: cur += ch
    if cur.strip(): out.append(cur.strip())
    return out

class Ins:
    __slots__ = ('text', 'op', 'kind', 'rd', 'wr', 'srcc', 'srcab', 'tag', 'passes', 'wide', 'slots', 'need')
    def __init__(self, text, tag=None):
        self.text = text; self.tag = tag; self.need = None
        t = text.split(';')[0].strip()
        self.rd, self.wr, self.srcc, self.srcab = set(), set(), [], set()
        self.passes = 0; self.wide = False; self.slots = 1
        if not t or t.endswith(':') or t.startswith('.'):
            self.op = ''; self.kind = 'label' if t.endswith(':') else 'none'; self.slots = 0; return
        sp = t.split(None, 1)
        op = sp[0]; self.op = op
        rest = sp[1] if len(sp) > 1 else ''
        ops = split_ops(rest)
        mods = ''
        if ops:
            last = ops[-1].split(None, 1)
            if len(last) > 1 and not last[0].endswith(','):
                ops[-1] = last[0]; mods = last[1]
        R = [regs_of(o) for o in ops]
        flat = lambda l: set(x for y in l for x in y)
        base = re.sub(r'_(e32|e64|dpp|sdwa)$', '', op)
        if op.startswith('v_mfma'):
            self.kind = 'mfma'; self.wr = set(R[0]); self.srcab = flat(R[1:3]); self.srcc = R[3]; self.rd = self.srcab | set(R[3])
            self.passes = 8 if '32x32' in op else 4; self.slots = 2
        elif op.startswith('v_cmp'):
            self.kind = 'valu'; self.wr = set(R[0]); self.rd = flat(R[1:])
        elif op.startswith('v_permlane') and 'swap' in op:
            self.kind = 'perm'; self.wr = flat(R[:2]); self.rd = flat(R[:2]); self.slots = 2
        elif op.startswith('v_readlane') or op.startswith('v_readfirstlane'):
            self.kind = 'rdlane'; self.wr = set(R[0]); self.rd = flat(R[1:])
        elif op.startswith('v_'):
            self.kind = 'trans' if base in TRANS else 'valu'
            if self.kind == 'trans': self.slots = 2
            self.wr = set(R[0]); self.rd = flat(R[1:])
            if base in ('v_fmac_f32', 'v_dot2c_f32_bf16', 'v_writelane_b32') : self.rd |= self.wr
            if base.startswith('v_cndmask') and len(ops) == 3: self.rd.add('vcc')
            if op.endswith('_dpp') or 'quad_perm' in mods or 'row_' in mods: self.kind = 'dpp'; self.rd |= self.wr
            if base.startswith('v_pk_') or base.startswith('v_dot2'): self.kind = 'pk'
            if base in ('v_add_co_u32', 'v_sub_co_u32', 'v_addc_co_u32'):
                self.wr = flat(R[:2]); self.rd = flat(R[2:])
        elif op.startswith('ds_read') or op.startswith('ds_bpermute') or op.startswith('ds_swizzle'):
            self.kind = 'ds_r'; self.wr = set(R[0]); self.rd = flat(R[1:])
        elif op.startswith('ds_'):
            self.kind = 'ds_w'; self.rd = flat(R)
        elif op.startswith('buffer_load') or op.startswith('global_load'):
            if re.search(r'\blds\b', mods):
                self.kind = 'dma'; self.rd = flat(R) | {'m0'}
            else:
                self.kind = 'vm_ld'; self.wr = set(R[0]); self.rd = flat(R[1:])
        elif op.startswith('buffer_store') or op.startswith('global_store'):
            self.kind = 'vm_st'; self.rd = flat(R); self.wide = 'x4' in op or 'x3' in op
            self.srcc = R[0] if op.startswith('buffer') else R[1]
        elif op.startswith('buffer_atomic') or op.startswith('global_atomic'):
            self.kind = 'vm_st'; self.rd = flat(R)
            if 'sc0' in mods: self.kind = 'vm_ld'; self.wr = set(R[0])
        elif op.startswith('buffer_wbl2') or op.startswith('buffer_inv'):
            self.kind = 'vm_st'
        elif op.startswith('s_load') or op.startswith('s_memtime') or op.startswith('s_memrealtime'):
            self.kind = 'smem'; self.wr = set(R[0]); self.rd = flat(R[1:])
        elif op == 's_waitcnt': self.kind = 'wait'; self.slots = 0
        elif op == 's_nop': self.kind = 'nop'; self.slots = 0
        elif op == 's_barrier': self.kind = 'barrier'; self.slots = 0
        elif op.startswith('s_cbranch') or op == 's_branch' or op == 's_endpgm': self.kind = 'branch'; self.slots = 0
        elif op.startswith('s_cmp') or op.startswith('s_bitcmp'): self.kind = 'salu'; self.rd = flat(R); self.wr = {'scc'}; self.slots = 0
        elif op in ('s_setprio', 's_sleep'): self.kind = 'salu'; self.slots = 0
        elif op.startswith('s_'):
            self.kind = 'salu'; self.wr = set(R[0]); self.rd = flat(R[1:]); self.slots = 0
            if 'saveexec' in op: self.wr.add('exec'); self.rd.add('exec')
        else:
            raise ValueError('unknown op ' + text)
    def states(self):
        if self.kind in ('label', 'none'): return 0
        if self.kind == 'nop': return int(self.text.split()[1]) + 1
        return 1

VALU_K = ('valu', 'trans', 'perm', 'rdlane', 'dpp', 'pk')
VMEM_K = ('vm_ld', 'vm_st', 'dma')
DS_K = ('ds_r', 'ds_w')

def isv(r): return r[0] in 'va' and r != 'vcc'
def iss(r): return r[0] == 's' and r != 'scc' or r == 'vcc'

def hazard(p, c):
    n = 0
    if p.kind in VALU_K:
        vw = {r for r in p.wr if isv(r)}; sw = {r for r in p.wr if iss(r)}
        if c.kind == 'mfma' and vw & c.rd: n = max(n, 2)
        if p.kind == 'trans' and c.kind in VALU_K and c.kind != 'trans' and vw & c.rd: n = max(n, 1)
        if c.kind in ('perm', 'dpp') and vw & c.rd: n = max(n, 2)
        if c.kind == 'rdlane' and vw & c.rd: n = max(n, 1)
        if c.kind in VMEM_K and sw & c.rd: n = max(n, 5)
        if c.kind in VALU_K and sw & c.rd: n = max(n, 4 if c.kind == 'rdlane' else 2)
        if c.kind == 'salu' and sw & c.rd: n = max(n, 1)
        if p.op.startswith('v_dot') and vw & (c.rd | c.wr) and c.op != p.op: n = max(n, 3)
    if p.kind == 'mfma':
        big = p.passes == 8
        if c.kind == 'mfma':
            if p.wr & c.srcab: n = max(n, 12 if big else 8)
            if p.wr & set(c.srcc):
                if not (list(c.srcc) and set(c.srcc) == p.wr and c.passes == p.passes): n = max(n, 10 if big else 6)
        elif c.kind in VALU_K or c.kind in VMEM_K or c.kind in DS_K:
            if p.wr & (c.rd | c.wr): n = max(n, 12 if big else 8)
            if set(p.srcc) & c.wr: n = max(n, 7 if big else 3)
    if p.kind == 'vm_st' and p.wide and set(p.srcc) & c.wr: n = max(n, 2 if c.kind in VALU_K else 1)
    if p.kind == 'salu' and 'm0' in p.wr and c.kind == 'dma': n = max(n, 1)
    return n

class Prog:
    def __init__(self): self.items = []
    def __call__(self, text, tag=None):
        for l in text.split('\n'):
            l = l.strip()
            if l: self.items.append(Ins(l, tag))
        return self
    def add(self, items): self.items.extend(items)
    def wait_tag(self, tag):
        i = Ins('s_waitcnt vmcnt(0)'); i.need = ('vmtag', tag); self.items.append(i)
    def wait_lds(self):
        i = Ins('s_waitcnt lgkmcnt(0)'); i.need = ('lgkm0',); self.items.append(i)

def finalize(items, stats=None):
    out = []; vm = []; lg = []; smem_pending = set()
    def emit_wait(vn, ln):
        parts = []
        if vn is not None: parts.append(f'vmcnt({vn})')
        if ln is not None: parts.append(f'lgkmcnt({ln})')
        if parts:
            if out and out[-1].kind == 'wait' and out[-1].need == 'auto':
                prev = out.pop().text
                m = re.search(r'vmcnt\((\d+)\)', prev)
                if m and vn is None: parts.insert(0, m.group(0))
                m = re.search(r'lgkmcnt\((\d+)\)', prev)
                if m and ln is None: parts.append(m.group(0))
            w = Ins('s_waitcnt ' + ' '.join(parts)); w.need = 'auto'; out.append(w)
    for it in items:
        vn = ln = None
        if it.kind == 'wait':
            if it.need and it.need[0] == 'vmtag':
                idx = [k for k, e in enumerate(vm) if e.tag == it.need[1]]
                if idx:
                    vn = len(vm) - 1 - idx[-1]; del vm[:idx[-1] + 1]; emit_wait(vn, None)
                continue
            if it.need and it.need[0] == 'lgkm0':
                if lg or smem_pending:
                    lg.clear(); smem_pending.clear(); emit_wait(None, 0)
                continue
            m = re.search(r'vmcnt\((\d+)\)', it.text)
            if m:
                k = int(m.group(1)); del vm[:max(0, len(vm) - k)]
            m = re.search(r'lgkmcnt\((\d+)\)', it.text)
            if m:
                k = int(m.group(1)); del lg[:max(0, len(lg) - k)]
                if k == 0: smem_pending.clear()
            out.append(it); continue
        touch = it.rd | it.wr
        idx = [k for k, e in enumerate(vm) if e.wr & touch]
        if idx: vn = len(vm) - 1 - idx[-1]
        if it.kind in VMEM_K and len(vm) >= 63 and (vn is None or vn > 61): vn = 61
        if touch & smem_pending: ln = 0
        else:
            idx2 = [k for k, e in enumerate(lg) if e.wr & touch]
            if idx2:
                ln = len(lg) - 1 - idx2[-1]
                if smem_pending: ln = 0
                ln = min(ln, 15)
        if it.kind == 'branch' and it.op != 's_endpgm' or it.kind == 'label':
            pass
        if vn is not None: del vm[:max(0, len(vm) - vn)]
        if ln is not None:
            del lg[:max(0, len(lg) - ln)]
            if ln == 0: smem_pending.clear()
        emit_wait(vn, ln)
        if it.kind in VMEM_K: vm.append(it)
        if it.kind in DS_K: lg.append(it)
        if it.kind == 'smem': smem_pending |= it.wr
        out.append(it)
    res = []
    for it in out:
        need = 0; dist = 0
        for p in reversed(res):
            if dist >= 13: break
            h = hazard(p, it)
            if h > dist: need = max(need, h - dist)
            dist += p.states()
        if need:
            res.append(Ins(f's_nop {need - 1}'))
            if stats is not None: stats['nops'] = stats.get('nops', 0) + need
        res.append(it)
    return res

def text_of(items):
    return '\n'.join((i.text if i.kind == 'label' else '    ' + i.text) for i in items) + '\n'

def interleave(main, fill, budget=6):
    out = []; fi = 0
    for g in main:
        out.extend(g)
        used = sum(i.slots for i in g if i.kind != 'mfma')
        while fi < len(fill) and used + fill[fi].slots <= budget:
            out.append(fill[fi]); used += fill[fi].slots; fi += 1
    return out, fill[fi:]

def I(text, tag=None):
    return [Ins(l.strip(), tag) for l in text.split('\n') if l.strip()]


PROF = 0xD00000
class Prof:
    def __init__(self, on, kid, srd, wave): self.on = on; self.kid = kid; self.n = 0; self.srd = srd; self.wave = wave; self.names = []
    def start(self, p):
        if self.on: p('s_memrealtime s[72:73]\ns_memtime s[76:77]')
    def stamp(self, name):
        if not self.on: return []
        self.n += 1; self.names.append(name)
        return I(f's_memtime s[{76+2*self.n}:{77+2*self.n}]')
    def finish(self, p, v0=200):
        if not self.on: return
        p('s_waitcnt vmcnt(0)')
        for i in self.stamp('drained'): p.add([i])
        p('s_memrealtime s[74:75]\ns_waitcnt lgkmcnt(0)')
        p(f'v_mov_b32 v{v0}, s72\nv_mov_b32 v{v0+1}, s74')
        for k in range(self.n): p(f's_sub_u32 s3, s{78+2*k}, s76\nv_mov_b32 v{v0+2+k}, s3')
        for k in range(self.n, 14): p(f'v_mov_b32 v{v0+2+k}, 0')
        p(f's_lshl_b32 s3, s2, 8\ns_lshl_b32 s72, s{self.wave}, 6\ns_add_u32 s3, s3, s72\ns_add_u32 s3, s3, {PROF + self.kid*65536}')
        p(f'v_mov_b32 v{v0+16}, 0\ns_mov_b64 exec, 1')
        for q in range(4): p(f'buffer_store_dwordx4 v[{v0+4*q}:{v0+4*q+3}], v{v0+16}, s[{self.srd}:{self.srd+3}], s3 offen offset:{16*q}')
        print('prof', self.kid, self.names)
```

```python
from gen import *

ACT, WF, KVP, KVF, WS_SIZE = 0, 0x900000, 0xB00000, 0xC00000, 0xE00000
LOG2E = 0x3fb8aa3b; NLOG2E = 0xbfb8aa3b; LN2 = 0x3f317218
SLOT = 28672; EXTRA = 5 * SLOT
K1_LDS = 163840

sX, sW, sWS, sT = 20, 24, 28, 32
sWave, sRb, sIdx, sXoff, sXl, sHU, sTmp, sTmp2, sOnes, sSc = 36, 37, 38, 39, 40, 41, 42, 43, 44, 45
sU0, sStb, sSt, sLn2, sEps, sKvb, sPitchW = 46, 50, 51, 52, 53, 54, 55
sM0, sM1 = 56, 58
sSide, sSideK, sSideN = 60, 61, 62
sC0 = 68
sF0, sF1 = 66, 67
XF = 16
ACC = 128
E = 192
P = 200
PK = 208
PV = 224
vLane, vXa, vXb, vXe, vXo, vWd, vWq, vSt = 1, 2, 3, 4, 5, 6, 7, 8
vA = 240
vS = 10
vSc, vBi = 14, 248
vT0, vT1 = 250, 252
NPOOL = 8

def vr(b, n=1): return f'v{b}' if n == 1 else f'v[{b}:{b+n-1}]'
def ar(b, n=1): return f'a{b}' if n == 1 else f'a[{b}:{b+n-1}]'
def sr(b, n=1): return f's{b}' if n == 1 else f's[{b}:{b+n-1}]'

def srd(p, dst, lo, size):
    p(f's_mov_b32 s{dst}, s{lo}\ns_mov_b32 s{dst+1}, s{lo+1}\ns_mov_b32 s{dst+2}, {size}\ns_mov_b32 s{dst+3}, 0x20000')

def prologue(p, opt):
    p(f'''
    s_cmp_ge_u32 s2, 256
    s_cbranch_scc1 L_k1_end''')
    Prof(opt.get('prof') or opt.get('span') is not None, 0, sWS, sWave).start(p)
    p(f'''
    s_load_dwordx4 s[4:7], s[0:1], 0
    s_load_dwordx2 s[8:9], s[0:1], 16
    s_load_dwordx4 s[12:15], s[0:1], 32
    s_load_dwordx2 s[18:19], s[0:1], 64
    v_and_b32 v{vLane}, 63, v0
    v_lshrrev_b32 v{vT0}, 6, v0
    s_and_b32 s{sTmp}, s2, 7
    v_readfirstlane_b32 s{sWave}, v{vT0}
    s_lshr_b32 s{sTmp2}, s2, 3
    s_and_b32 s{sRb}, s{sTmp}, 1
    s_lshl_b32 s{sRb}, s{sRb}, 3
    s_and_b32 s{sIdx}, s{sTmp2}, 7
    s_add_u32 s{sRb}, s{sRb}, s{sIdx}
    s_lshr_b32 s{sTmp2}, s{sTmp2}, 3
    s_and_b32 s{sIdx}, s{sTmp}, 6
    s_and_b32 s{sTmp}, s{sTmp2}, 1
    s_add_u32 s{sIdx}, s{sIdx}, s{sTmp}
    s_lshr_b32 s3, s{sTmp2}, 1
    s_lshl_b32 s{sXoff}, s{sRb}, 2
    s_add_u32 s{sXoff}, s{sXoff}, s{sWave}
    s_mul_i32 s{sStb}, s{sXoff}, {140*1024}
    s_mul_i32 s{sXoff}, s{sXoff}, {32*896}
    s_mul_i32 s{sXl}, s{sWave}, {SLOT}
    s_add_u32 s{sXl}, s{sXl}, {SLOT}
    s_mov_b32 s{sOnes}, 0x3f803f80
    v_lshrrev_b32 v{vT0}, 2, v{vLane}
    v_mul_u32_u24 v{vXa}, 896, v{vT0}
    v_lshrrev_b32 v{vT0}, 4, v{vLane}
    v_xor_b32 v{vT0}, v{vT0}, v{vLane}
    v_and_b32 v{vT0}, 3, v{vT0}
    v_lshl_add_u32 v{vXa}, v{vT0}, 4, v{vXa}
    v_add_u32 v{vXb}, {16*896}, v{vXa}
    s_waitcnt lgkmcnt(0)
    ''')
    srd(p, sX, 4, 2048 * 896)
    for sg in range(14):
        for g in range(2):
            p(f's_add_u32 m0, s{sXl}, {(2*sg+g)*1024 - 64*sg}')
            p(f'buffer_load_dwordx4 v{vXa if g == 0 else vXb}, s[{sX}:{sX+3}], s{sXoff} offen offset:{64*sg} lds', tag=f'x{sg}')
    srd(p, sWS, 18, WS_SIZE)
    if opt.get('span') is not None:
        p(f'''s_waitcnt lgkmcnt(0)
        v_mov_b32 v{vT0}, s72
        v_mov_b32 v{vT1}, 0xd80000
        s_cmp_lg_u32 s2, 0
        s_cselect_b32 s3, 0x1000000, 0
        v_add_u32 v{vT1}, s3, v{vT1}
        buffer_store_dword v{vT0}, v{vT1}, s[{sWS}:{sWS+3}], 0 offen sc1
        s_lshr_b32 s3, s2, 7''')
    p(f'''
    v_and_b32 v{vT0}, 31, v{vLane}
    v_lshrrev_b32 v{vT1}, 4, v{vT0}
    v_lshlrev_b32 v{vXe}, 10, v{vT1}
    v_and_b32 v{vT1}, 15, v{vLane}
    v_lshl_add_u32 v{vXe}, v{vT1}, 6, v{vXe}
    v_lshrrev_b32 v{vT1}, 2, v{vT1}
    v_lshrrev_b32 v{vT0}, 5, v{vLane}
    v_xor_b32 v{vT0}, v{vT0}, v{vT1}
    v_lshl_add_u32 v{vXe}, v{vT0}, 4, v{vXe}
    v_add_u32 v{vXe}, s{sXl}, v{vXe}
    v_xor_b32 v{vXo}, 32, v{vXe}
    v_lshlrev_b32 v{vSt}, 4, v{vLane}
    s_cmp_eq_u32 s3, 1
    s_cbranch_scc1 L_k1_ffn
    ''')

def w_lane_setup(p, pitch, dst, clamp6):
    p(f'''
    v_lshrrev_b32 v{vT0}, 3, v{vLane}
    v_mul_u32_u24 v{dst}, {pitch}, v{vT0}
    v_lshlrev_b32 v{vT0}, 1, v{vT0}
    v_and_b32 v{vT0}, 4, v{vT0}
    v_and_b32 v{vT1}, 7, v{vLane}
    v_xor_b32 v{vT0}, v{vT0}, v{vT1}''')
    if clamp6: p(f'v_min_u32 v{vT0}, 6, v{vT0}')
    p(f'v_lshl_add_u32 v{dst}, v{vT0}, 4, v{dst}')

def tr_lane(p, dst, win, rowsh=7, halfrows=8):
    p(f'''
    v_lshrrev_b32 v{vT0}, 5, v{vLane}
    v_mul_u32_u24 v{dst}, {halfrows*128}, v{vT0}
    v_bfe_u32 v{vT0}, v{vLane}, 2, 2
    v_lshl_add_u32 v{dst}, v{vT0}, 7, v{dst}
    v_lshrrev_b32 v{vT0}, 1, v{vT0}
    v_lshlrev_b32 v{vT0}, 6, v{vT0}
    v_bfe_u32 v{vT1}, v{vLane}, 4, 1
    v_lshlrev_b32 v{vT1}, 5, v{vT1}
    v_and_b32 v{vT0+1}, 3, v{vLane}
    v_lshl_add_u32 v{vT1}, v{vT0+1}, 3, v{vT1}''')
    if win: p(f'v_add_u32 v{vT1}, {win}, v{vT1}')
    p(f'''v_xor_b32 v{vT0}, v{vT0}, v{vT1}
    v_add_u32 v{dst}, v{dst}, v{vT0}''')

def hu_dma(hu, sunit, pitch, vaddr):
    L = []
    L += I(f's_mul_i32 s{sHU}, s{sWave}, {56*pitch}\ns_add_u32 s{sHU}, s{sHU}, s{sunit}\ns_mul_i32 s{sTmp2}, s{sWave}, 7168')
    for i in range(7):
        L += I(f's_add_u32 m0, s{sTmp2}, {(hu % 5)*SLOT + i*1024}')
        L += I(f's_add_u32 s{sTmp}, s{sHU}, {((hu & 1)*224 + 8*i)*pitch}')
        L += I(f'buffer_load_dwordx4 v{vaddr}, s[{sW}:{sW+3}], s{sTmp} offen lds', tag=f'hu{hu}')
    return L

def layernorm(p, sign_const):
    for k in range(4): p(f'v_mov_b32 v{vS+k}, 0')
    for sg in range(14):
        p.wait_tag(f'x{sg}')
        for o in range(2):
            ks = 2*sg + o
            p(f'ds_read_b128 {vr(XF+4*ks, 4)}, v{vXe if o == 0 else vXo} offset:{sg*2048}')
        if sg >= 1: stats(p, sg - 1)
    stats(p, 13)

def stats(p, sg):
    for r in range(8):
        x = XF + 8*sg + r
        p(f'v_dot2c_f32_bf16 v{vS + (r&1)}, s{sOnes}, v{x}')
        p(f'v_dot2c_f32_bf16 v{vS + 2 + (r&1)}, v{x}, v{x}')

def ln_finish(sign_const):
    p = Prog()
    p(f'''
    v_add_f32 v{vS}, v{vS}, v{vS+1}
    v_add_f32 v{vS+2}, v{vS+2}, v{vS+3}
    v_mov_b32 v{vS+1}, v{vS}
    v_mov_b32 v{vS+3}, v{vS+2}
    v_permlane32_swap_b32 v{vS}, v{vS+1}
    v_permlane32_swap_b32 v{vS+2}, v{vS+3}
    v_add_f32 v{vS}, v{vS}, v{vS+1}
    v_add_f32 v{vS+2}, v{vS+2}, v{vS+3}
    v_mul_f32 v{vS}, 0x3b124925, v{vS}
    v_mul_f32 v{vS+2}, 0x3b124925, v{vS+2}
    v_fma_f32 v{vS+2}, -v{vS}, v{vS}, v{vS+2}
    v_max_f32 v{vS+2}, 0, v{vS+2}
    v_add_f32 v{vS+2}, 0x3727c5ac, v{vS+2}
    v_rsq_f32 v{vS+2}, v{vS+2}
    s_mov_b32 s{sSc}, {sign_const}
    v_mul_f32 v{vSc}, s{sSc}, v{vS+2}
    v_mul_f32 v{vBi}, v{vS}, v{vSc}
    v_sub_f32 v{vBi}, 0, v{vBi}
    ''')
    for r in range(0, 112, 2):
        for k in range(2):
            x = XF + r + k; t = E + 2*k + 4*((r >> 1) & 1)
            p(f'v_lshlrev_b32 v{t}, 16, v{x}\nv_and_b32 v{t+1}, 0xffff0000, v{x}')
        for k in range(2):
            t = E + 2*k + 4*((r >> 1) & 1)
            p(f'v_pk_fma_f32 {vr(t,2)}, {vr(t,2)}, {vr(vSc,2)}, {vr(vBi,2)} op_sel_hi:[1,0,0]')
        for k in range(2):
            x = XF + r + k; t = E + 2*k + 4*((r >> 1) & 1)
            p(f'v_cvt_pk_bf16_f32 v{x}, v{t}, v{t+1}')
    return p.items

class Gemm:
    LOOK = 4
    def __init__(self): self.ops = []
    def unit(self, hu0, wins, accs, transposed):
        for kh in range(2):
            for ks in range(14):
                for w, a in zip(wins, accs):
                    self.ops.append((hu0 + kh, ks, w, 14*kh + ks, a, kh == 0 and ks == 0, transposed))
    def read(self, n):
        hu, ks, areg, _, _, _, _ = self.ops[n]
        b = (n % NPOOL) * 4
        off = ((hu % 5) & 1) * SLOT + ks * 2048
        base = areg + 2 * ((hu % 5) >> 1)
        return I(f'ds_read_b64_tr_b16 {ar(b,2)}, v{base} offset:{off}\nds_read_b64_tr_b16 {ar(b+2,2)}, v{base} offset:{off+512}')
    def mfma(self, n):
        _, _, _, xks, acc, first, tr = self.ops[n]
        w = ar((n % NPOOL) * 4, 4); x = vr(XF + 4*xks, 4)
        a, b = (w, x) if tr else (x, w)
        return I(f'v_mfma_f32_32x32x16_bf16 {vr(acc,16)}, {a}, {b}, {"0" if first else vr(acc,16)}')
    def groups(self, lo, hi, extra):
        G = []
        for n in range(lo, hi):
            g = self.mfma(n) + extra.get(n, [])
            if n + self.LOOK < len(self.ops): g += self.read(n + self.LOOK)
            G.append(g)
        return G

def barrier_items(hu):
    p = Prog(); p.wait_tag(f'hu{hu}'); p('s_barrier'); return p.items

def act_epilogue(acc, kind, sks, koff):
    L = []
    for t in range(2):
        a = acc + 8*t; pk = P + 4*t
        L += act_ops(a, kind)
        for j in range(4): L += I(f'v_cvt_pk_bf16_f32 v{pk+j}, v{E+2*j}, v{E+2*j+1}')
        L += I(f's_add_u32 s{sSt}, s{sks}, {(koff + t)*1024}')
        L += I(f'buffer_store_dwordx4 {vr(pk,4)}, v{vSt}, s[{sWS}:{sWS+3}], s{sSt} offen {STFLAG[0]}', tag='st')
    return L

STFLAG = ['']
def act_ops(a, kind):
    L = []
    if kind == 'silu':
        for j in range(8): L += I(f'v_exp_f32 v{E+j}, v{a+j}')
        for j in range(8): L += I(f'v_add_f32 v{E+j}, 1.0, v{E+j}')
        for j in range(8): L += I(f'v_rcp_f32 v{E+j}, v{E+j}')
        for j in range(8): L += I(f'v_mul_f32 v{E+j}, v{a+j}, v{E+j}')
    else:
        for j in range(8): L += I(f'v_exp_f32_e64 v{E+j}, v{a+j} clamp')
        for j in range(8): L += I(f'v_max_f32 v{a+j}, 0, v{a+j}')
        for j in range(8): L += I(f'v_fma_f32 v{a+j}, v{a+j}, s{sLn2}, v{vEps}')
        for j in range(8): L += I(f'v_add_f32 v{E+j}, v{a+j}, v{E+j}')
    return L
vEps = 9

def addr_bases(p, dst, lane):
    p(f'v_mov_b32 v{dst}, v{lane}\nv_add_u32 v{dst+2}, {2*SLOT}, v{lane}\nv_add_u32 v{dst+4}, {4*SLOT}, v{lane}')

def run_unit(p, G, lo, hi, fill, extra, budget=6):
    body, rest = interleave(G.groups(lo, hi, extra), fill, budget)
    p.add(body); p.add(rest)

def ffn_role(p, opt):
    p('L_k1_ffn:')
    pf = Prof(opt.get('prof'), 0, sWS, sWave)
    p.add(pf.stamp('x issued'))
    srd(p, sW, 12, 448 * 3584)
    p(f'''
    s_mul_i32 s{sTmp}, s{sIdx}, 448
    s_and_b32 s{sTmp2}, s{sIdx}, 1
    s_lshl_b32 s{sSc}, s{sTmp2}, 6
    s_add_u32 s{sU0}, s{sTmp}, s{sSc}
    s_add_u32 s{sU0+1}, s{sU0}, 128
    s_add_u32 s{sU0+2}, s{sU0}, 256
    s_add_u32 s{sU0+3}, s{sTmp}, 384
    s_mul_i32 s{sEps}, s{sTmp2}, 448
    s_sub_u32 s{sU0+3}, s{sU0+3}, s{sEps}
    s_mul_i32 s{sTmp}, s{sIdx}, {14*1024}
    s_add_u32 s{sTmp}, s{sTmp}, s{sStb}
    s_lshl_b32 s{sEps}, s{sTmp2}, 11
    s_add_u32 s{sC0}, s{sTmp}, s{sEps}
    s_add_u32 s{sC0+1}, s{sC0}, 4096
    s_add_u32 s{sC0+2}, s{sC0}, 8192
    s_mul_i32 s{sEps}, s{sTmp2}, {12*1024}
    s_add_u32 s{sC0+3}, s{sTmp}, {12*1024}
    s_sub_u32 s{sC0+3}, s{sC0+3}, s{sEps}
    ''')
    w_lane_setup(p, 3584, vWd, False)
    p.add(hu_dma(0, sU0, 3584, vWd))
    tr_lane(p, vT1+1, 0)
    addr_bases(p, vA, vT1+1)
    p(f'v_xor_b32 v{vT0}, 64, v{vT1+1}')
    addr_bases(p, vA+1, vT0)
    p(f'v_xor_b32 v{vA+6}, s{sSc}, v{vT1+1}')
    layernorm(p, NLOG2E)
    p.add(pf.stamp('stats'))
    p.wait_lds(); p.add(barrier_items(0))
    p.add(pf.stamp('B0'))
    for hu in range(1, 5): p.add(hu_dma(hu, sU0 + hu//2, 3584, vWd))
    p.add(pf.stamp('dma'))
    p.add(ln_finish(NLOG2E))
    p.add(pf.stamp('ln'))
    G = Gemm()
    for u in range(3): G.unit(2*u, [vA, vA+1], [ACC + 32*(u&1), ACC + 32*(u&1) + 16], True)
    G.unit(6, [vA+6], [ACC + 32], True)
    starts = [0, 28, 56, 84, 112, 140, 168, 182, 196]
    extra = {}
    for hu in range(1, 8):
        n = starts[hu] - G.LOOK - 2
        it = barrier_items(hu)
        if 5 <= hu + 3 <= 7: it += hu_dma(hu + 3, sU0 + (hu+3)//2, 3584, vWd)
        extra[n] = it
    p(f'v_add_u32 v{vA+8}, {2*SLOT}, v{vA+6}')
    for n in range(G.LOOK): p.add(G.read(n))
    fill = []
    for u in range(4):
        lo, hi = starts[2*u], starts[2*u+2]
        run_unit(p, G, lo, hi, fill, extra)
        p.add(pf.stamp(f'u{u}'))
        acc = ACC + 32*(u&1)
        fill = act_epilogue(acc, 'silu', sC0 + u, 0)
        if u < 3: fill += act_epilogue(acc + 16, 'silu', sC0 + u, 2)
    p.add(fill)
    p.add(pf.stamp('epi'))
    pf.finish(p)
    p('L_k1_end:\ns_endpgm')

def att_role(p, opt):
    pf = Prof(opt.get('prof'), 0, sWS, sWave)
    p.add(pf.stamp('x issued'))
    srd(p, sW, 6, 448 * 2688)
    p(f'''
    s_mul_i32 s{sTmp}, s{sIdx}, 112
    s_add_u32 s{sU0}, s{sTmp}, 896
    s_add_u32 s{sU0+1}, s{sTmp}, 1792
    s_min_u32 s{sTmp}, s{sIdx}, 6
    s_lshl_b32 s{sU0+2}, s{sTmp}, 7
    s_lshl_b32 s{sTmp}, s{sTmp}, 12
    s_add_u32 s{sC0}, s{sStb}, s{sTmp}
    s_add_u32 s{sC0}, s{sC0}, {112*1024}
    s_lshl_b32 s{sKvb}, s{sRb}, 3
    s_add_u32 s{sKvb}, s{sKvb}, s{sIdx}
    s_lshl_b32 s{sSide}, s{sKvb}, 2
    s_add_u32 s{sSide}, s{sSide}, s{sWave}
    s_lshl_b32 s{sSide}, s{sSide}, 1
    s_lshl_b32 s{sKvb}, s{sKvb}, 13
    s_lshl_b32 s{sTmp}, s{sWave}, 11
    s_add_u32 s{sKvb}, s{sKvb}, s{sTmp}
    s_add_u32 s{sKvb}, s{sKvb}, {KVP}
    s_mov_b32 s{sLn2}, {LN2}
    v_mov_b32 v{vEps}, 0x358637bd
    ''')
    w_lane_setup(p, 2688, vWd, True)
    p.add(hu_dma(0, sU0, 2688, vWd))
    w_lane_setup(p, 2688, vWq, False)
    tr_lane(p, vT1+1, 0)
    addr_bases(p, vA, vT1+1)
    tr_lane(p, vT1+1, 48)
    addr_bases(p, vA+1, vT1+1)
    p(f'''
    v_and_b32 v{vT0}, 31, v{vLane}
    v_cmp_eq_u32 s[{sM0}:{sM0+1}], 28, v{vT0}
    v_cmp_eq_u32 s[{sM1}:{sM1+1}], 0, v{vT0}
    ''')
    layernorm(p, LOG2E)
    p.add(pf.stamp('stats'))
    p.wait_lds(); p.add(barrier_items(0))
    p.add(pf.stamp('B0'))
    for hu in range(1, 4): p.add(hu_dma(hu, sU0 + hu//2, 2688, vWd))
    p.add(hu_dma(4, sU0 + 2, 2688, vWq))
    p.add(pf.stamp('dma'))
    p.add(ln_finish(LOG2E))
    p.add(pf.stamp('ln'))
    vQ = vXa
    G = Gemm()
    G.unit(0, [vA, vA+1], [ACC, ACC+16], False)
    G.unit(2, [vA, vA+1], [ACC+32, ACC+48], False)
    G.unit(4, [vA, vA+1], [ACC, ACC+16], True)
    starts = [0, 28, 56, 84, 112, 140, 168]
    extra = {}
    for hu in range(1, 6):
        n = starts[hu] - G.LOOK - 2
        it = barrier_items(hu)
        if hu == 2: it += hu_dma(5, sU0 + 2, 2688, vWq) + side_dma()
        extra[n] = it
    fix = I(f'v_xor_b32 v{vA+5}, 64, v{vA+4}\nv_xor_b32 v{vA+1}, 64, v{vA}')
    extra[starts[4] - G.LOOK - 1] = fix
    for n in range(G.LOOK): p.add(G.read(n))
    run_unit(p, G, 0, 56, [], extra)
    p.add(pf.stamp('K'))
    fill = []
    for hh in range(2):
        for t in range(2):
            a = ACC + 16*hh + 8*t
            fill += act_ops(a, 'phi')
            for j in range(4): fill += I(f'v_cvt_pk_bf16_f32 v{PK+8*hh+4*t+j}, v{E+2*j}, v{E+2*j+1}')
    run_unit(p, G, 56, 112, fill, extra)
    p.add(pf.stamp('V'))
    fill = []
    vOne = E
    fill += I(f'v_mov_b32 v{vOne}, s{sOnes}\nv_mov_b32 v{vOne+1}, 0')
    for hh in range(2):
        a = ACC + 32 + 16*hh; m = sM0 if hh == 0 else sM1
        for j in range(8): fill += I(f'v_cvt_pk_bf16_f32 v{PV+8*hh+j}, v{a+2*j}, v{a+2*j+1}')
        for j in range(8): fill += I(f'v_cndmask_b32 v{PV+8*hh+j}, v{PV+8*hh+j}, v{vOne}, s[{m}:{m+1}]')
    for hh in range(2):
        a = ACC + 32 + 16*hh
        fill += I(f'v_mfma_f32_32x32x16_bf16 {vr(a,16)}, {vr(PK+8*hh,4)}, {vr(PV+8*hh,4)}, 0')
    for hh in range(2):
        a = ACC + 32 + 16*hh
        fill += I(f'v_mfma_f32_32x32x16_bf16 {vr(a,16)}, {vr(PK+8*hh+4,4)}, {vr(PV+8*hh+4,4)}, {vr(a,16)}')
    vEx = vXb
    fill += I(f'''s_lshl_b32 s{sF0}, s{sWave}, 13
    s_add_u32 s{sF0}, s{sF0}, {SLOT}
    v_add_u32 v{vEx}, s{sF0}, v{vSt}
    s_mov_b32 s{sM0}, 0
    s_mov_b32 s{sM0+1}, -1
    s_mov_b32 s{sM1}, -1
    s_mov_b32 s{sM1+1}, 0''')
    fill += side_setup()
    for j in range(4): fill += I(f'v_cndmask_b32 v{ACC+32+12+j}, v{ACC+32+12+j}, v{vOne+1}, s[{sM0}:{sM0+1}]')
    for j in range(4): fill += I(f'v_cndmask_b32 v{ACC+48+j}, v{ACC+48+j}, v{vOne+1}, s[{sM1}:{sM1+1}]')
    for u in range(8): fill += I(f'ds_write_b128 v{vEx}, {vr(ACC+32+4*u,4)} offset:{u*1024}')
    run_unit(p, G, 112, 140, fill, extra)
    p.add(pf.stamp('Q0'))
    q = Prog(); q.wait_lds(); q('s_barrier')
    extra[142] = q.items
    q = Prog()
    q(f's_lshl_b32 s{sF0}, s{sWave}, 11\ns_add_u32 s{sF0}, s{sF0}, {SLOT}\nv_add_u32 v{vEx}, s{sF0}, v{vSt}')
    for w in range(4):
        for i in range(2): q(f'ds_read_b128 {vr(ACC+32+8*w+4*i,4)}, v{vEx} offset:{w*8192 + i*1024}')
    q.add(side_finish())
    for w in range(1, 4):
        for j in range(8): q(f'v_add_f32 v{ACC+32+j}, v{ACC+32+j}, v{ACC+32+8*w+j}')
    for i in range(2): q(f'buffer_store_dwordx4 {vr(ACC+32+4*i,4)}, v{vSt}, s[{sWS}:{sWS+3}], s{sKvb} offen offset:{i*1024} {STFLAG[0]}', tag='st')
    run_unit(p, G, 140, 143, [], extra)
    run_unit(p, G, 143, 168, q.items, extra)
    p.add(pf.stamp('Q1'))
    p.add(act_epilogue(ACC, 'phi', sC0, 0))
    p.add(act_epilogue(ACC + 16, 'phi', sC0, 2))
    p.add(pf.stamp('epi'))
    pf.finish(p)
    p('s_endpgm')

def side_dma():
    L = []
    for i in range(2):
        L += I(f'''s_add_u32 s{sTmp}, s{sSide}, {i}
        s_min_u32 s{sTmp}, s{sTmp}, 979
        s_mul_hi_u32 s{sSideK+2*i}, s{sTmp}, 0x24924925
        s_mul_i32 s{sTmp2}, s{sSideK+2*i}, 7
        s_sub_u32 s{sSideN+2*i}, s{sTmp}, s{sTmp2}
        s_mov_b32 s{sT+2}, {448*896}
        s_cmp_lt_u32 s{sSideK+2*i}, 112
        s_cselect_b32 s{sT}, s14, s8
        s_cselect_b32 s{sT+1}, s15, s9
        s_cselect_b32 s{sT+2}, {1792*896}, s{sT+2}
        s_mov_b32 s{sT+3}, 0x20000
        s_cselect_b32 s{sTmp}, 0, 112
        s_sub_u32 s{sTmp}, s{sSideK+2*i}, s{sTmp}
        s_mul_i32 s{sTmp}, s{sTmp}, {16*896}
        s_lshl_b32 s{sTmp2}, s{sSideN+2*i}, 7
        s_add_u32 s{sTmp}, s{sTmp}, s{sTmp2}
        s_lshl_b32 s{sTmp2}, s{sWave}, 12''')
        for h in range(2):
            L += I(f'''s_add_u32 m0, s{sTmp2}, {EXTRA + i*2048 + h*1024}
            s_add_u32 s{sHU}, s{sTmp}, {h*8*896}
            buffer_load_dwordx4 v{vSd}, s[{sT}:{sT+3}], s{sHU} offen lds''', tag='side')
    return L
vSd = 254
def side_setup():
    p = Prog()
    tr_lane(p, vT1+1, 0, halfrows=4)
    p(f's_lshl_b32 s{sF0}, s{sWave}, 12\ns_add_u32 s{sF0}, s{sF0}, {EXTRA}\nv_add_u32 v{vXe}, s{sF0}, v{vT1+1}\nv_xor_b32 v{vXo}, 64, v{vXe}')
    return p.items
def side_finish():
    p = Prog(); p.wait_tag('side')
    for i in range(2):
        for cc in range(2):
            b = PK + 8*i + 4*cc
            for pp in range(2): p(f'ds_read_b64_tr_b16 {vr(b+2*pp,2)}, v{vXe if cc == 0 else vXo} offset:{i*2048 + pp*1024}')
    for i in range(2):
        p(f'''s_mul_i32 s{sF0}, s{sSideN+2*i}, {2*140*1024}
        s_lshl_b32 s{sF1}, s{sSideK+2*i}, 10
        s_add_u32 s{sF0}, s{sF0}, s{sF1}
        s_add_u32 s{sF0}, s{sF0}, {WF}
        s_add_u32 s{sF1}, s{sF0}, {140*1024}''')
        p(f'buffer_store_dwordx4 {vr(PK+8*i,4)}, v{vSt}, s[{sWS}:{sWS+3}], s{sF0} offen {STFLAG[0]}', tag='st')
        p(f'buffer_store_dwordx4 {vr(PK+8*i+4,4)}, v{vSt}, s[{sWS}:{sWS+3}], s{sF1} offen {STFLAG[0]}', tag='st')
    return p.items

def build_k1(opt):
    STFLAG[0] = opt.get('k1_store', '')
    pro = Prog(); prologue(pro, opt)
    a = Prog(); w_lane_setup(a, 896, vSd, False); att_role(a, opt)
    f = Prog(); ffn_role(f, opt)
    st = {}
    A = finalize(pro.items + a.items, st); F = finalize(pro.items + f.items, st)
    k = [i for i, x in enumerate(F) if x.text.startswith('L_k1_ffn')][0]
    assert [x.text for x in A[:k]] == [x.text for x in F[:k]]
    print('k1 nop states', st, 'instr', len(A), len(F) - k)
    return text_of(A) + text_of(F[k:])
```

```python
from gen import *
from k1 import ACT, WF, KVP, KVF, WS_SIZE, vr, ar, sr, srd

K2_LDS = 139264
EXW = 17408

def build_kr(opt):
    p = Prog()
    p(f'''
    s_cmp_ge_u32 s2, 8
    s_cbranch_scc1 L_kr_end''')
    pf = Prof(opt.get('prof'), 1, 8, 12); pf.start(p)
    p(f'''
    s_load_dwordx2 s[4:5], s[0:1], 64
    v_lshrrev_b32 v2, 6, v0
    v_and_b32 v1, 63, v0
    v_lshlrev_b32 v1, 4, v1
    v_readfirstlane_b32 s3, v2
    v_readfirstlane_b32 s12, v2
    s_lshl_b32 s6, s2, 13
    s_lshl_b32 s7, s3, 11
    s_add_u32 s6, s6, s7
    s_add_u32 s6, s6, {KVP}
    s_lshl_b32 s7, s2, 12
    s_lshl_b32 s3, s3, 10
    s_add_u32 s7, s7, s3
    s_add_u32 s7, s7, {KVF}
    s_waitcnt lgkmcnt(0)
    ''')
    srd(p, 8, 4, WS_SIZE)
    for rb in range(16):
        for i in range(2): p(f'buffer_load_dwordx4 {vr(8+8*rb+4*i,4)}, v1, s[8:11], s6 offen offset:{i*1024}')
        p('s_add_u32 s6, s6, 65536')
    for rb in range(1, 16):
        for j in range(8): p(f'v_add_f32 v{8+j}, v{8+j}, v{8+8*rb+j}')
    for j in range(4): p(f'v_cvt_pk_bf16_f32 v{4+j}, v{8+2*j}, v{9+2*j}')
    p('buffer_store_dwordx4 v[4:7], v1, s[8:11], s7 offen')
    pf.finish(p, 16)
    p('L_kr_end:\ns_endpgm')
    return text_of(finalize(p.items))

sWS, sX, sO = 20, 24, 28
sWave, sRb, sCb, sKs, sT, sT2, sAtt, sRow, sC = 32, 33, 34, 35, 36, 37, 38, 39, 40
sHi = 42
vLane, vA0, vA1, vW0, vW1, vL16, vExS, vExF, vRdS, vRdF, vRow, vT0, vT1, vEps = 1, 2, 3, 4, 5, 6, 7, 8, 9, 10, 11, 12, 13, 14
PQ, WO, O, NUM, SS, XR, TM = 16, 72, 128, 184, 216, 232, 240
AF, AS, KV, POOL = 0, 64, 128, 160
DEPTH = 6

def build_k2(opt):
    p = Prog()
    p(f'''
    s_cmp_ge_u32 s2, 224
    s_cbranch_scc1 L_k2_end''')
    pf = Prof(opt.get('prof'), 2, sWS, sWave); pf.start(p)
    p(f'''
    s_load_dwordx2 s[4:5], s[0:1], 0
    s_load_dwordx2 s[6:7], s[0:1], 48
    s_load_dwordx2 s[8:9], s[0:1], 64
    v_and_b32 v{vLane}, 63, v0
    v_lshrrev_b32 v{vT0}, 6, v0
    s_and_b32 s{sT}, s2, 7
    v_readfirstlane_b32 s{sWave}, v{vT0}
    s_lshr_b32 s{sT2}, s2, 3
    s_lshr_b32 s{sCb}, s{sT2}, 2
    s_and_b32 s{sT2}, s{sT2}, 3
    s_lshl_b32 s{sRb}, s{sT}, 2
    s_add_u32 s{sRb}, s{sRb}, s{sT2}
    s_mul_i32 s{sKs}, s{sT2}, 7
    s_add_u32 s{sKs}, s{sKs}, s{sCb}
    s_lshl_b32 s{sKs}, s{sKs}, 10
    v_lshlrev_b32 v{vL16}, 4, v{vLane}
    s_mul_i32 s{sT}, s{sRb}, {280*1024}
    s_mul_i32 s{sT2}, s{sWave}, {28*1024}
    s_add_u32 s{sT}, s{sT}, s{sT2}
    v_add_u32 v{vA0}, s{sT}, v{vL16}
    v_add_u32 v{vA1}, {140*1024}, v{vA0}
    s_mul_i32 s{sT}, s{sCb}, {280*1024}
    s_add_u32 s{sT}, s{sT}, s{sT2}
    s_add_u32 s{sT}, s{sT}, {WF}
    v_add_u32 v{vW0}, s{sT}, v{vL16}
    v_add_u32 v{vW1}, {140*1024}, v{vW0}
    s_mul_i32 s{sAtt}, s{sWave}, {21*1024}
    s_sub_u32 s{sAtt}, {112*1024}, s{sAtt}
    s_waitcnt lgkmcnt(0)
    ''')
    srd(p, sWS, 8, WS_SIZE)
    ws = f's[{sWS}:{sWS+3}]'
    def att_load(dst, va, i):
        p(f's_add_u32 s{sT}, s{sAtt}, {i*1024}\nbuffer_load_dwordx4 {dst}, v{va}, {ws}, s{sT} offen')
    for i in range(7): att_load(vr(PQ+4*i, 4), vA0, i)
    p(f's_lshl_b32 s{sT2}, s{sWave}, 13\ns_add_u32 s{sT2}, s{sT2}, {KVF}')
    for i in range(8):
        if i == 4: p(f's_add_u32 s{sT2}, s{sT2}, 4096')
        p(f'buffer_load_dwordx4 {ar(KV+4*i,4)}, v{vL16}, {ws}, s{sT2} offen offset:{(i%4)*1024}')
    for i in range(7): att_load(vr(PQ+28+4*i, 4), vA1, i)
    for i in range(7):
        att_load(vr(WO+4*i, 4), vW0, i); att_load(vr(WO+28+4*i, 4), vW1, i)
    def step_loads(n):
        b = POOL + 16*(n % DEPTH)
        q = Prog()
        for j, va in enumerate((vA0, vW0, vW1, vA1)):
            q(f'buffer_load_dwordx4 {ar(b+4*j,4)}, v{va}, {ws}, s{sKs} offen')
        q(f's_add_u32 s{sKs}, s{sKs}, 1024\ns_cmp_eq_u32 s{sKs}, {28*1024}\ns_cselect_b32 s{sKs}, 0, s{sKs}')
        return q.items
    srd(p, sX, 4, 2048*896); srd(p, sO, 6, 2048*896)
    p(f'''
    v_lshrrev_b32 v{vT0}, 3, v{vLane}
    v_mul_u32_u24 v{vRow}, 896, v{vT0}
    v_mul_u32_u24 v{vRdS}, 272, v{vT0}
    v_and_b32 v{vT0}, 7, v{vLane}
    v_lshl_add_u32 v{vRow}, v{vT0}, 4, v{vRow}
    v_lshl_add_u32 v{vRdS}, v{vT0}, 5, v{vRdS}
    s_mul_i32 s{sT}, s{sWave}, {16*272}
    v_add_u32 v{vRdS}, s{sT}, v{vRdS}
    v_add_u32 v{vRdF}, {4*EXW}, v{vRdS}
    s_lshl_b32 s{sRow}, s{sRb}, 2
    s_add_u32 s{sRow}, s{sRow}, s{sWave}
    s_mul_i32 s{sRow}, s{sRow}, {16*896}
    s_lshl_b32 s{sT}, s{sCb}, 7
    s_add_u32 s{sRow}, s{sRow}, s{sT}
    s_add_u32 s{sRow+2}, s{sRow}, {8*896}
    v_and_b32 v{vT0}, 31, v{vLane}
    v_mul_u32_u24 v{vExS}, 272, v{vT0}
    v_lshrrev_b32 v{vT0}, 5, v{vLane}
    v_lshl_add_u32 v{vExS}, v{vT0}, 4, v{vExS}
    s_mul_i32 s{sT}, s{sWave}, {EXW}
    v_add_u32 v{vExS}, s{sT}, v{vExS}
    v_add_u32 v{vExF}, {4*EXW}, v{vExS}
    s_mov_b32 s{sHi}, 0
    s_mov_b32 s{sHi+1}, -1
    s_mov_b32 s{sC}, 0xbef5fdf0
    v_mov_b32 v{vEps}, 0x358637bd
    ''')
    for n in range(DEPTH): p.add(step_loads(n))
    p.add(pf.stamp('issued'))
    WS = (0, 6, 14, 20)
    for mt in range(2):
        for pr in range(2):
            for hh in range(2):
                d = NUM + 16*hh; w = PQ + 28*mt + WS[2*pr+hh]; k = KV + 16*pr + 8*hh
                p(f'v_mfma_f32_32x32x16_bf16 {vr(d,16)}, {ar(k,4)}, {vr(w,4)}, 0')
            for hh in range(2):
                d = NUM + 16*hh; w = PQ + 28*mt + WS[2*pr+hh]; k = KV + 16*pr + 8*hh
                p(f'v_mfma_f32_32x32x16_bf16 {vr(d,16)}, {ar(k+4,4)}, {vr(w+4,4)}, {vr(d,16)}')
            p(f'''v_mov_b32 v{vT0}, v{NUM+12}
            v_mov_b32 v{vT1}, v{NUM+16}
            v_permlane32_swap_b32 v{NUM+12}, v{vT0}
            v_permlane32_swap_b32 v{vT1}, v{NUM+16}
            v_add_f32 v{vT0}, v{vT0}, v{vEps}
            v_add_f32 v{vT1}, v{vT1}, v{vEps}
            v_rcp_f32 v{vT0}, v{vT0}
            v_rcp_f32 v{vT1}, v{vT1}''')
            for j in range(16): p(f'v_mul_f32 v{NUM+j}, v{NUM+j}, v{vT0}')
            for j in range(16): p(f'v_mul_f32 v{NUM+16+j}, v{NUM+16+j}, v{vT1}')
            o = O + 28*mt + 14*pr
            for j in range(6): p(f'v_cvt_pk_bf16_f32 v{o+j}, v{NUM+2*j}, v{NUM+2*j+1}')
            for j in range(2):
                p(f'v_cvt_pk_bf16_f32 v{TM+j}, v{NUM+12+2*j}, v{NUM+13+2*j}')
                p(f'v_cvt_pk_bf16_f32 v{TM+2+j}, v{NUM+16+2*j}, v{NUM+17+2*j}')
            for j in range(2): p(f'v_cndmask_b32 v{o+6+j}, v{TM+j}, v{TM+2+j}, s[{sHi}:{sHi+1}]')
            for j in range(6): p(f'v_cvt_pk_bf16_f32 v{o+8+j}, v{NUM+20+2*j}, v{NUM+21+2*j}')
    p.add(pf.stamp('num'))
    for i in range(7):
        for mt in range(2):
            for nt in range(2):
                a = AS + 16*(2*mt+nt)
                p(f'v_mfma_f32_32x32x16_bf16 {ar(a,16)}, {vr(WO+28*nt+4*i,4)}, {vr(O+28*mt+4*i,4)}, {"0" if i == 0 else ar(a,16)}')
    for i in range(2): p(f'buffer_load_dwordx4 {vr(XR+4*i,4)}, v{vRow}, s[{sX}:{sX+3}], s{sRow+2*i} offen')
    p.add(pf.stamp('oproj'))
    def ex_write(acc, va):
        L = []
        for mt in range(2):
            for nt in range(2):
                for q in range(4):
                    L += I(f'ds_write_b128 v{va}, {ar(acc+16*(2*mt+nt)+4*q,4)} offset:{mt*32*272 + nt*128 + q*32}')
        return L
    def ex_read(dst, tmp, va):
        L = []
        for part in range(4):
            d = dst if part == 0 else tmp + 16*(part-1)
            for i in range(2):
                for h in range(2): L += I(f'ds_read_b128 {vr(d+8*i+4*h,4)}, v{va} offset:{part*EXW + i*8*272 + h*16}')
        return L
    groups = []
    for n in range(28):
        b = POOL + 16*(n % DEPTH)
        for j, (mt, nt) in enumerate(((0,0),(0,1),(1,1),(1,0))):
            a = AF + 16*(2*mt+nt)
            g = I(f'v_mfma_f32_32x32x16_bf16 {ar(a,16)}, {ar(b+4+4*nt,4)}, {ar(b+12*mt,4)}, {"0" if n == 0 else ar(a,16)}')
            if j == 3 and n + DEPTH < 28: g += step_loads(n + DEPTH)
            groups.append(g)
    body, rest = interleave(groups[:24], ex_write(AS, vExS), 2)
    p.add(body); p.add(rest)
    body, _ = interleave(groups[24:32], [], 2)
    p.add(body)
    p.wait_lds(); p('s_barrier')
    p.add(pf.stamp('step8'))
    fill = ex_read(SS, PQ, vRdS)
    for j in range(16): fill += I(f'v_add_f32 v{SS+j}, v{SS+j}, v{PQ+j}\nv_add_f32 v{PQ+16+j}, v{PQ+16+j}, v{PQ+32+j}')
    for j in range(16): fill += I(f'v_add_f32 v{SS+j}, v{SS+j}, v{PQ+16+j}')
    for j in range(16): fill += I(f'v_mul_f32 v{SS+j}, s{sC}, v{SS+j}')
    XU = WO
    for j in range(8): fill += I(f'v_lshlrev_b32 v{XU+2*j}, 16, v{XR+j}\nv_and_b32 v{XU+2*j+1}, 0xffff0000, v{XR+j}')
    body, rest = interleave(groups[32:], fill, 4)
    p.add(body); p.add(rest)
    p.add(pf.stamp('step28'))
    p.add(ex_write(AF, vExF))
    p.wait_lds(); p('s_barrier')
    p.add(pf.stamp('fex'))
    FF = NUM
    p.add(ex_read(FF, PQ, vRdF))
    for j in range(0, 16, 2):
        p(f'v_pk_add_f32 {vr(FF+j,2)}, {vr(FF+j,2)}, {vr(PQ+j,2)}')
        p(f'v_pk_add_f32 {vr(PQ+16+j,2)}, {vr(PQ+16+j,2)}, {vr(PQ+32+j,2)}')
    ET = NUM + 16
    for i in range(2):
        js = range(8*i, 8*i+8)
        for j in js[::2]: p(f'v_pk_add_f32 {vr(FF+j,2)}, {vr(FF+j,2)}, {vr(PQ+16+j,2)}')
        for j in js: p(f'v_exp_f32 v{ET+j}, v{FF+j}')
        for j in js[::2]: p(f'v_pk_add_f32 {vr(ET+j,2)}, {vr(ET+j,2)}, 1.0 op_sel_hi:[1,0]')
        for j in js: p(f'v_rcp_f32 v{ET+j}, v{ET+j}')
        for j in js[::2]: p(f'v_pk_mul_f32 {vr(FF+j,2)}, {vr(FF+j,2)}, {vr(ET+j,2)}')
        for j in js[::2]: p(f'v_pk_fma_f32 {vr(FF+j,2)}, {vr(FF+j,2)}, {vr(SS+j,2)}, {vr(XU+j,2)}')
        for j in js[::2]: p(f'v_cvt_pk_bf16_f32 v{XR+j//2}, v{FF+j}, v{FF+j+1}')
        p(f'buffer_store_dwordx4 {vr(XR+4*i,4)}, v{vRow}, s[{sO}:{sO+3}], s{sRow+2*i} offen')
    p.add(pf.stamp('epi'))
    pf.finish(p)
    p('L_k2_end:\ns_endpgm')
    st = {}
    R = finalize(p.items, st)
    print('k2 nop states', st, 'instr', len(R))
    return text_of(R)
```

```python
import sys
sys.path.insert(0, 'work')
from asmlib import *
import k1, k2
NAME = 'recurrent_scan__linear_attn_block__dense_activation_silu__prompt'

def build(opt, extra_empty=0):
    ref = open(f'cdna_kernels/{NAME}.s.ref').read().split('\n')
    head = [l for l in ref if l.startswith(';') and 'launch' not in l and 'grid=' not in l]
    probe = opt.get('probe')
    launches = ['; @launch kernel=p_kernel grid=(1,1,1) block=(64,1,1) lds=0'] if probe else []
    launches += [f'; @launch kernel=k1_kernel grid=(256,1,1) block=(256,1,1) lds={k1.K1_LDS}',
                f'; @launch kernel=kr_kernel grid=(8,1,1) block=(256,1,1) lds=0']
    launches += ['; @launch kernel=e_kernel grid=(1,1,1) block=(64,1,1) lds=0'] * extra_empty
    launches += [f'; @launch kernel=k2_kernel grid=(224,1,1) block=(256,1,1) lds={k2.K2_LDS}']
    span = opt.get('span')
    if span is not None: launches += ['; @launch kernel=d_kernel grid=(1,1,1) block=(64,1,1) lds=0']
    t = header(head + launches)
    if probe:
        off, n = {'bx': (24, 100), 'ws': (64, 100), 'none': (24, 0)}[probe]
        t += kernel_begin('p_kernel') + f'''    s_cmp_ge_u32 s2, 1
    s_cbranch_scc1 L_p_end
    s_load_dwordx2 s[4:5], s[0:1], {off}
    v_mov_b32 v1, 0
    s_waitcnt lgkmcnt(0)
    s_mov_b32 s8, s4
    s_mov_b32 s9, s5
    s_mov_b32 s10, {2048*896}
    s_mov_b32 s11, 0x20000
''' + '''    buffer_load_dword v2, v1, s[8:11], 0 offen
    s_waitcnt vmcnt(0)
    v_and_b32 v2, 0, v2
    v_add_u32 v1, 16384, v1
    v_add_u32 v1, v1, v2
''' * n + 'L_p_end:\n    s_endpgm\n'
    t += kernel_begin('k1_kernel') + k1.build_k1(opt)
    t += kernel_begin('kr_kernel') + k2.build_kr(opt)
    if extra_empty: t += kernel_begin('e_kernel') + '    s_endpgm\n'
    t += kernel_begin('k2_kernel') + k2.build_k2(opt)
    if span is not None:
        t += kernel_begin('d_kernel') + f'''    s_cmp_ge_u32 s2, 1
    s_cbranch_scc1 L_d_end
    s_load_dwordx2 s[4:5], s[0:1], 64
    s_waitcnt lgkmcnt(0)
    s_add_u32 s4, s4, 0xd80000
    s_addc_u32 s5, s5, 0
    s_load_dword s6, s[4:5], 0
    s_memrealtime s[8:9]
    s_waitcnt lgkmcnt(0)
    s_sub_u32 s7, s8, s6
    s_mul_i32 s7, s7, {span}
    s_min_u32 s7, s7, 20000
L_d_spin:
    s_memrealtime s[10:11]
    s_waitcnt lgkmcnt(0)
    s_sub_u32 s12, s10, s8
    s_cmp_lt_u32 s12, s7
    s_cbranch_scc1 L_d_spin
L_d_end:
    s_endpgm
'''
    t += '.section .rodata,"a"\n'
    if span is not None: t += descriptor('d_kernel', 8)
    if probe: t += descriptor('p_kernel', 8)
    t += descriptor('k1_kernel', 256, 32)
    t += descriptor('kr_kernel', 136)
    if extra_empty: t += descriptor('e_kernel', 8)
    t += descriptor('k2_kernel', 256, 256)
    return t

if __name__ == '__main__':
    out = sys.argv[1] if len(sys.argv) > 1 else f'cdna_kernels/{NAME}.s'
    opt = dict(a.split('=') for a in sys.argv[2:])
    open(out, 'w').write(build(opt, int(opt.get('empty', 0))))
    print('wrote', out)
```
